```python
import torch

def _softmax(x, axis=-1):
    return torch.softmax(x, dim=axis)
def _gelu(x):
    return torch.nn.functional.gelu(x, approximate="tanh")
def _silu(x):
    return torch.nn.functional.silu(x)
def _sigmoid(x):
    return torch.sigmoid(x)
def _layernorm(x, axis=-1, eps=1e-5):
    m = x.mean(dim=axis, keepdim=True)
    v = x.var(dim=axis, keepdim=True, unbiased=False)
    return (x - m) / torch.sqrt(v + eps)
def _scatter_add(tgt, idx, src, axis=0):
    return tgt.clone().index_add_(axis, idx, src)
def _segment_sum(src, seg, n):
    out = torch.zeros((n,) + src.shape[1:], dtype=src.dtype)
    return out.index_add_(0, seg, src)
def _pad(x, pw):
    flat = tuple(v for pair in reversed(pw) for v in pair)
    return torch.nn.functional.pad(x, flat)

kernel_name = 'sequential_preLN__spectral_fnet__moe_arch_mod__prompt'

def setup_inputs():

    _w = (lambda a: (lambda t: t.to(torch.bfloat16) if t.is_floating_point() else t)(torch.as_tensor(a)))
    def _A_setup():
        B, S, D = 1, 2048, 640
        ns = torch.arange(S)[:, None] * torch.arange(S)[None, :]
        nd = torch.arange(D)[:, None] * torch.arange(D)[None, :]
        Ws_re = torch.cos(-2.0 * torch.pi * ns / S).to(float)
        Ws_im = torch.sin(-2.0 * torch.pi * ns / S).to(float)
        Wd_re = torch.cos(-2.0 * torch.pi * nd / D).to(float)
        Wd_im = torch.sin(-2.0 * torch.pi * nd / D).to(float)
        return {
            "x": _w((lambda *s: torch.randn(*s, dtype=torch.bfloat16) * 0.05)(B, S, D)),
            "dft_seq_re": _w(Ws_re),
            "dft_seq_im": _w(Ws_im),
            "dft_hid_re": _w(Wd_re),
            "dft_hid_im": _w(Wd_im),
        }
    _A_in = _A_setup()

    def _B_setup():
        B, S, D, F, C = 1, 2048, 640, 1536, 2
        return {
            "x": _w((lambda *s: torch.randn(*s, dtype=torch.bfloat16) * 0.05)(B, S, D)),
            "w_r": _w((lambda *s: torch.randn(*s, dtype=torch.bfloat16) * 1.6)(D)),
            "w_gate": _w((lambda *s: torch.randn(*s, dtype=torch.bfloat16) * 0.4)(D, F)),
            "w_up": _w((lambda *s: torch.randn(*s, dtype=torch.bfloat16) * 0.4)(D, F)),
            "w_down": _w((lambda *s: torch.randn(*s, dtype=torch.bfloat16) * 0.4)(F, D)),
        }
    _B_in = _B_setup()

    return {
        "A_x": _A_in["x"],
        "A_dft_seq_re": _A_in["dft_seq_re"],
        "A_dft_seq_im": _A_in["dft_seq_im"],
        "A_dft_hid_re": _A_in["dft_hid_re"],
        "A_dft_hid_im": _A_in["dft_hid_im"],
        "B_x": _B_in["x"],
        "B_w_r": _B_in["w_r"],
        "B_w_gate": _B_in["w_gate"],
        "B_w_up": _B_in["w_up"],
        "B_w_down": _B_in["w_down"],
    }

def reference(A_x, A_dft_seq_re, A_dft_seq_im, A_dft_hid_re, A_dft_hid_im, B_x, B_w_r, B_w_gate, B_w_up, B_w_down):
    def _A_ref(x, dft_seq_re, dft_seq_im, dft_hid_re, dft_hid_im):
        a = torch.einsum("bsd,ed->bse", x, dft_hid_re)
        b = torch.einsum("bsd,ed->bse", x, dft_hid_im)
        y = torch.einsum("ts,bse->bte", dft_seq_re, a) - torch.einsum("ts,bse->bte", dft_seq_im, b)
        return y

    def _B_ref(x, w_r, w_gate, w_up, w_down):
        B, S, D = x.shape
        C = 2
        r = x @ w_r
        idx = torch.argsort(-r, axis=-1)[:, :C]
        idx_e = (lambda x, n, axis: torch.repeat_interleave(x, n, dim=axis))(idx.reshape(B, C, 1), D, axis=2)
        x_sel = (lambda x, i, axis: torch.take_along_dim(x, i, dim=axis))(x, idx_e, axis=1)
        g = _silu(x_sel @ w_gate)
        u = x_sel @ w_up
        y = (g * u) @ w_down
        r_sel = _sigmoid((lambda x, i, axis: torch.take_along_dim(x, i, dim=axis))(r, idx, axis=1))
        y = y * r_sel.reshape(B, C, 1)
        b_off = (torch.arange(B) * S).reshape(B, 1)
        flat_idx = (idx + b_off).reshape(B * C)
        zero = (x * 0.0).reshape(B * S, D)
        upd = _scatter_add(zero, flat_idx, y.reshape(B * C, D), axis=0)
        return x + upd.reshape(B, S, D)

    x = A_x
    h = x + _A_ref(_layernorm(x, axis=-1), A_dft_seq_re, A_dft_seq_im, A_dft_hid_re, A_dft_hid_im)
    h2 = h + _B_ref(_layernorm(h, axis=-1), B_w_r, B_w_gate, B_w_up, B_w_down)
    return h2
```

```python
import re, struct
def f2u(x): return struct.unpack('<I',struct.pack('<f',x))[0]
def fl(x): return hex(f2u(x))
class Alloc:
    def __init__(s,start=0,limit=512): s.n=start; s.limit=limit; s.hi=start
    def __call__(s,cnt=1,al=None):
        if al is None: al=1 if cnt==1 else 2
        s.n=(s.n+al-1)//al*al; r=s.n; s.n+=cnt; s.hi=max(s.hi,s.n); assert s.n<=s.limit; return r
def v(a,n=1): return f"v{a}" if n==1 else f"v[{a}:{a+n-1}]"
def s(a,n=1): return f"s{a}" if n==1 else f"s[{a}:{a+n-1}]"
REG=re.compile(r'\b([vas])\[(\d+):(\d+)\]|\b([vas])(\d+)\b|\b(vcc|exec|m0)\b')
def regs(op):
    out=set()
    for m in REG.finditer(op):
        if m.group(1): out|={(m.group(1),i) for i in range(int(m.group(2)),int(m.group(3))+1)}
        elif m.group(4): out.add((m.group(4),int(m.group(5))))
        else: out.add((m.group(6),0))
    return out
TRANS=('v_exp_f32','v_log_f32','v_rcp_f32','v_rsq_f32','v_sqrt_f32','v_sin_f32','v_cos_f32')
class I:
    def __init__(s,text):
        s.text=text; t=text.split(';')[0].strip(); s.op=t.split()[0] if t else ''
        rest=t[len(s.op):]; ops=[o.strip() for o in re.split(r',(?![^\[]*\])',rest)] if rest.strip() else []
        s.ops=ops; op=s.op
        s.valu=op.startswith('v_') and not op.startswith('v_mfma'); s.mfma=op.startswith('v_mfma')
        s.vmem=op.startswith(('buffer_','global_')); s.ds=op.startswith('ds_'); s.salu=op.startswith('s_')
        s.dpp='_dpp' in op; s.trans=op.replace('_e32','').replace('_e64','') in TRANS; s.dot=op.startswith('v_dot')
        s.perml=op.startswith('v_permlane'); s.rl=op.startswith(('v_readlane','v_readfirstlane'))
        R=[regs(o) for o in ops]; allr=set().union(*R) if R else set()
        s.d=set(); s.u=set(); s.srcc=set(); s.sdata=set()
        if s.vmem:
            if 'lds' in t.split(): s.u=allr|{('m0',0)}
            elif 'store' in op or ('atomic' in op):
                s.u=allr
                if 'atomic' in op and 'sc0' in t: s.d=R[0]
                if 'x4' in op or 'x3' in op: s.sdata=R[0] if op.startswith('buffer') else R[1]
            elif op in('buffer_wbl2','buffer_inv'): pass
            else: s.d=R[0]; s.u=set().union(*R[1:])
        elif s.ds:
            if 'write' in op or (op.startswith(('ds_add','ds_max')) and 'rtn' not in op): s.u=allr
            else: s.d=R[0]; s.u=set().union(*R[1:])
        elif s.mfma: s.d=R[0]; s.u=R[1]|R[2]|R[3]; s.srcc=R[3]; s.ab=R[1]|R[2]
        elif s.valu:
            s.d=set(R[0]); s.u=set().union(*R[1:]) if len(R)>1 else set()
            if s.perml: s.d=allr; s.u=allr
            if op.startswith(('v_fmac','v_dot2c')) or s.dpp or 'writelane' in op: s.u|=R[0]
            if op.startswith(('v_add_co','v_addc_co','v_sub_co')): s.d|=R[1]
            if op.startswith('v_cmpx'): s.d|={('exec',0)}
        elif s.salu and ops and not op.startswith(('s_cmp','s_cbranch','s_branch','s_waitcnt','s_nop','s_sleep','s_setprio','s_barrier','s_endpgm')):
            s.d=set(R[0]); s.u=set().union(*R[1:]) if len(R)>1 else set()
            if 'saveexec' in op: s.d|={('exec',0)}
        s.passes=0
        if s.mfma: s.passes=8 if '32x32' in op else 4
def need(p,c):
    n=0; isv=lambda S:{r for r in S if r[0] in 'va'}; iss=lambda S:{r for r in S if r[0] in('s','vcc')}
    if p.valu:
        dv=isv(p.d); ds_=iss(p.d)
        if dv&c.u:
            if c.dpp or c.perml or c.mfma: n=max(n,2)
            if c.rl: n=max(n,1)
            if p.trans and c.valu and not c.trans: n=max(n,1)
            if p.trans and (c.ds or c.vmem): n=max(n,1)
        if p.dot and dv&(c.u|c.d) and not (c.op==p.op and not (dv&(regs(c.ops[1])|regs(c.ops[2])))): n=max(n,3)
        if ds_&c.u:
            if c.valu: n=max(n,4 if (c.rl or 'writelane' in c.op) else 2)
            if c.vmem: n=max(n,5)
        if ('exec',0) in p.d: n=max(n,5 if c.dpp else 4 if (c.rl or c.mfma or c.perml) else 0)
    if p.mfma:
        big=p.passes==8
        if c.mfma:
            if p.d&c.ab: n=max(n,12 if big else 8)
            if p.d&c.srcc and not (p.d==c.srcc and p.passes==c.passes): n=max(n,10 if big else 6)
            if p.d&c.d and not p.d&c.srcc: n=max(n,10 if big else 6)
        elif p.d&(c.u|c.d): n=max(n,12 if big else 8)
        if c.valu and p.srcc&c.d: n=max(n,7 if big else 3)
    if p.sdata&c.d: n=max(n,2)
    if p.salu and ('m0',0) in p.d and ('m0',0) in c.u and c.vmem: n=max(n,1)
    return n
def fix(lines):
    out=[]; hist=[]
    slot=0
    for ln in lines:
        t=ln.split(';')[0].strip()
        if not t or t.endswith(':') or t.startswith('.'):
            out.append(ln); continue
        c=I(t); w=0
        for p,ps in hist[-24:]:
            w=max(w,need(p,c)-(slot-ps-1))
        while w>0:
            k=min(w,16); out.append(f"    s_nop {k-1}"); slot+=k; w-=k
        out.append(ln); hist.append((c,slot))
        slot+= int(c.ops[0])+1 if c.op=='s_nop' else 1
        if c.op in('s_endpgm','s_branch'): hist=[]
    return out
class K:
    def __init__(s): s.l=[]
    def __call__(s,t):
        for x in t.split('\n'):
            x=x.strip()
            if x: s.l.append(x if x.endswith(':') else '    '+x)
def srd(k,d,b,n):
    k(f"s_mov_b32 s{d}, s{b}\ns_and_b32 s{d+1}, s{b+1}, 0xffff\ns_mov_b32 s{d+2}, {n}\ns_mov_b32 s{d+3}, 0x20000")
def build(kernels):
    o=[f"; @launch {'kernel='+n+' ' if len(kernels)>1 else ''}grid=({g},1,1) block=({b},1,1) lds={l}" for n,g,b,l,_,_ in kernels]
    o+=['.amdgcn_target "amdgcn-amd-amdhsa--gfx950"','.text']
    for n,g,b,l,nv,lines in kernels:
        o+=[f".globl {n}",".p2align 8",f".type {n},@function",f"{n}:"]+fix(lines)
    o.append('.section .rodata,"a"')
    for n,g,b,l,nv,lines in kernels:
        acc=min(256,(nv+3)//4*4)
        o+=[".p2align 6",f".amdhsa_kernel {n}",f"  .amdhsa_next_free_vgpr {nv}","  .amdhsa_next_free_sgpr 96",f"  .amdhsa_accum_offset {acc}","  .amdhsa_group_segment_fixed_size 0","  .amdhsa_kernarg_size 104","  .amdhsa_user_sgpr_count 2","  .amdhsa_user_sgpr_kernarg_segment_ptr 1","  .amdhsa_system_sgpr_workgroup_id_x 1",".end_amdhsa_kernel"]
    return "\n".join(o)+"\n"
```

```python
from asmlib import *
XB=2621440; GP=82432; ZB=32*GP
WS_KEY=0x290000; WS_ST=WS_KEY+8192; WS_SEL=WS_ST+16384; WS_P=WS_SEL+256; WS_END=WS_P+96*5120
SX,SW,SO=8,12,16
def cvt(k,d,a,b): k(f"v_cvt_pk_bf16_f32 {v(d)}, {a if isinstance(a,str) else v(a)}, {b if isinstance(b,str) else v(b)}")
def mf(k,d,a,b,c,n=4,op="16x16x32"): k(f"v_mfma_f32_{op}_bf16 {v(d,4)}, {v(a,n)}, {v(b,n)}, {v(c,4) if c is not None else 0}")
def rb(k,d,t):
    k(f"v_cvt_pk_bf16_f32 {v(t)}, {v(d)}, {v(d)}\nv_lshlrev_b32 {v(d)}, 16, {v(t)}")

def phaseA(k,R,ST=""):
    RS=10240; MN=RS+256
    X=R(80,2); va=R(); vb=R(); L=R(); q=R(); n=R(); t=[R() for _ in range(8)]
    k(f"""v_and_b32 {v(L)}, 63, v0
    v_lshrrev_b32 {v(t[0])}, 3, {v(L)}
    s_lshl_b32 s24, s22, 4
    v_add_u32 {v(t[0])}, s24, {v(t[0])}
    s_mov_b32 s25, 40960
    s_mul_i32 s26, s20, 1280
    v_and_b32 {v(t[1])}, 7, {v(L)}
    v_lshlrev_b32 {v(t[2])}, 4, {v(t[1])}
    v_mad_u32_u24 {v(va)}, {v(t[0])}, s25, {v(t[2])}
    s_add_u32 s27, s26, 327680""")
    for st in range(2):
        for i in range(10): k(f"buffer_load_dwordx4 {v(X+40*st+4*i,4)}, {v(va)}, {s(SX,4)}, s{26+st} offen offset:{128*i}")
    k(f"""v_mul_u32_u24 {v(vb)}, 160, {v(t[0])}
    v_lshrrev_b32 {v(t[2])}, 2, {v(t[1])}
    v_lshl_add_u32 {v(vb)}, {v(t[2])}, 3, {v(vb)}
    v_and_b32 {v(t[2])}, 3, {v(L)}
    s_lshr_b32 s30, s21, 1
    v_cmp_eq_u32 s[28:29], s30, {v(t[2])}""")
    vst=R(); vst2=R()
    k(f"""v_and_b32 {v(t[2])}, 1, {v(L)}
    v_cmp_eq_u32 s[32:33], 1, {v(t[2])}
    v_lshl_add_u32 {v(t[2])}, {v(t[2])}, 3, {v(t[0])}
    v_lshlrev_b32 {v(vst)}, 2, {v(t[2])}
    v_lshlrev_b32 {v(vst2)}, 1, {v(t[2])}
    v_lshrrev_b32 {v(q)}, 4, {v(L)}
    v_and_b32 {v(n)}, 15, {v(L)}""")
    G=R(16,2); sg=R()
    k(f"""v_and_b32 {v(t[0])}, 7, {v(L)}
    s_lshl_b32 s24, s22, 3
    v_add_u32 {v(t[0])}, s24, {v(t[0])}
    v_lshrrev_b32 {v(t[1])}, 3, {v(n)}
    v_lshlrev_b32 {v(t[2])}, 9, {v(t[1])}
    v_mad_u32_u24 {v(t[2])}, {v(t[0])}, s20, {v(t[2])}
    v_mov_b32 {v(sg)}, 0x80008000
    v_mul_lo_u32 {v(sg)}, {v(sg)}, {v(t[1])}
    v_lshl_add_u32 {v(t[3])}, {v(t[0])}, 1, {v(t[1])}
    v_cmp_eq_u32 vcc, 1, {v(t[3])}
    v_cndmask_b32_e64 {v(t[4])}, {v(t[0])}, 32, vcc
    v_cndmask_b32_e64 {v(t[2])}, {v(t[2])}, 0, vcc
    v_lshlrev_b32 {v(t[5])}, 7, {v(q)}
    v_mad_u32_u24 {v(t[2])}, {v(t[4])}, {v(t[5])}, {v(t[2])}
    v_cvt_f32_u32 {v(t[4])}, {v(t[4])}
    v_cvt_f32_u32 {v(t[2])}, {v(t[2])}
    v_mul_f32 {v(t[4])}, {fl(1/64)}, {v(t[4])}
    v_mul_f32 {v(t[2])}, {fl(1/2048)}, {v(t[2])}""")
    vz=R()
    k(f"""s_mov_b32 s24, {GP}
    v_mul_lo_u32 {v(vz)}, {v(t[0])}, s24
    v_lshl_add_u32 {v(t[5])}, {v(t[1])}, 5, s20
    v_mul_u32_u24 {v(t[5])}, 1288, {v(t[5])}
    v_mul_u32_u24 {v(t[6])}, 40, {v(q)}
    s_mul_i32 s24, s21, 160
    v_add3_u32 {v(vz)}, {v(vz)}, {v(t[5])}, {v(t[6])}
    v_add_u32 {v(vz)}, s24, {v(vz)}""")
    for j in range(16):
        kk=32*(j>>3)+16*((j>>2)&1)+(j&3)
        k(f"v_fmamk_f32 {v(G+j)}, {v(t[4])}, {fl(kk)}, {v(t[2])}")
    for j in range(16): k(f"v_fract_f32 {v(G+j)}, {v(G+j)}")
    for j in range(16): k(f"v_cos_f32 {v(G+j)}, {v(G+j)}")
    MC=R(16,2); MS=R(16,2); NC=R(16,2); NS=R(16,2); Zs=R(16,2); Zp=R(16,2); tc=R(5); ts=R(5)
    for a in (MC,MS,NC,NS,Zs,Zp):
        for i in range(4): k(f"v_mov_b32 {v(a+4*i+3)}, 0")
    k(f"""s_lshl_b32 s24, s21, 2
    v_lshl_add_u32 {v(t[0])}, {v(q)}, 5, s24
    v_cvt_f32_u32 {v(t[1])}, {v(n)}
    v_cvt_f32_u32 {v(t[2])}, {v(t[0])}
    v_mul_f32 {v(t[1])}, {fl(1/640)}, {v(t[1])}
    v_mul_f32 {v(t[2])}, {v(t[1])}, {v(t[2])}""")
    def trig(e,p0,i,dc,dsn):
        for jj in range(5): k(f"v_fmamk_f32 {v(tc+jj)}, {v(e)}, {fl(128*jj+i)}, {v(p0)}")
        for jj in range(5): k(f"v_fract_f32 {v(tc+jj)}, {v(tc+jj)}")
        for jj in range(5): k(f"v_sin_f32 {v(ts+jj)}, {v(tc+jj)}")
        for jj in range(5): k(f"v_cos_f32 {v(tc+jj)}, {v(tc+jj)}")
        for d,x in ((dsn,ts),(dc,tc)):
            cvt(k,d,x,x+1); cvt(k,d+1,x+2,x+3); cvt(k,d+2,x+4,"0")
    for i in range(4): trig(t[1],t[2],i,MC+4*i,MS+4*i)
    k(f"""v_lshrrev_b32 {v(t[1])}, 2, {v(n)}
    v_add_u32 {v(t[1])}, 16, {v(t[1])}
    v_and_b32 {v(t[3])}, 3, {v(n)}
    v_add_u32 {v(t[0])}, {v(t[0])}, {v(t[3])}
    v_cvt_f32_u32 {v(t[1])}, {v(t[1])}
    v_cvt_f32_u32 {v(t[2])}, {v(t[0])}
    v_mul_f32 {v(t[1])}, {fl(1/640)}, {v(t[1])}
    v_mul_f32 {v(t[2])}, {v(t[1])}, {v(t[2])}
    v_cmp_eq_u32 s[34:35], 0, {v(t[3])}
    v_cmp_eq_u32 s[36:37], 1, {v(t[3])}
    v_cmp_eq_u32 s[38:39], 2, {v(t[3])}
    v_cmp_eq_u32 s[40:41], 3, {v(t[3])}""")
    trig(t[1],t[2],0,NC+12,NS+12)
    for i in range(4):
        for a in (NC,NS):
            for j in range(3): k(f"v_cndmask_b32_e64 {v(a+4*i+j)}, 0, {v(a+12+j)}, s[{34+2*i}:{35+2*i}]")
    vr=R(); vq=R()
    k(f"""v_lshrrev_b32 {v(t[0])}, 2, {v(L)}
    v_mul_u32_u24 {v(vr)}, 160, {v(t[0])}
    v_and_b32 {v(t[0])}, 3, {v(L)}
    v_lshl_add_u32 {v(vr)}, {v(t[0])}, 3, {v(vr)}
    v_lshlrev_b32 {v(vq)}, 3, {v(q)}""")
    ac=R(8,2)
    for j in range(8): k(f"v_mov_b32 {v(ac+j)}, 0")
    k("s_mov_b32 s24, 0x3f803f80")
    for st in range(2):
        for i in range(10):
            k(f"s_waitcnt vmcnt({19-10*st-i})")
            for j in range(4):
                x=X+40*st+4*i+j
                k(f"v_dot2c_f32_bf16 {v(ac+4*st+(j&1))}, s24, {v(x)}\nv_dot2c_f32_bf16 {v(ac+4*st+2+(j&1))}, {v(x)}, {v(x)}")
        k(f"s_mov_b64 exec, s[28:29]\ns_bitcmp1_b32 s21, 0\ns_cbranch_scc1 A_odd{st}")
        for i in range(10): k(f"ds_write_b64 {v(vb)}, {v(X+40*st+4*i,2)} offset:{1280*st+16*i}")
        k(f"s_branch A_done{st}\nA_odd{st}:")
        for i in range(10): k(f"ds_write_b64 {v(vb)}, {v(X+40*st+4*i+2,2)} offset:{1280*st+16*i}")
        k(f"A_done{st}:\ns_mov_b64 exec, -1")
    k("s_nop 1")
    for j in range(4): k(f"v_add_f32 {v(ac+2*j)}, {v(ac+2*j)}, {v(ac+2*j+1)}")
    for pat in ("quad_perm:[1,0,3,2]","quad_perm:[2,3,0,1]","row_half_mirror"):
        for j in range(4): k(f"v_add_f32_dpp {v(ac+2*j)}, {v(ac+2*j)}, {v(ac+2*j)} {pat} row_mask:0xf bank_mask:0xf")
    k(f"""v_cndmask_b32_e64 {v(t[0])}, {v(ac)}, {v(ac+4)}, s[32:33]
    v_cndmask_b32_e64 {v(t[1])}, {v(ac+2)}, {v(ac+6)}, s[32:33]
    v_mul_f32 {v(t[0])}, {fl(-1/640)}, {v(t[0])}
    v_mul_f32 {v(t[1])}, {fl(1/640)}, {v(t[1])}
    v_fma_f32 {v(t[1])}, -{v(t[0])}, {v(t[0])}, {v(t[1])}
    v_max_f32 {v(t[1])}, 0, {v(t[1])}""")
    cvt(k,t[3],t[0],t[0]); rb(k,t[1],t[2])
    k(f"ds_write_b16 {v(vst2)}, {v(t[3])} offset:{MN}\nv_add_f32 {v(t[1])}, {fl(1e-5)}, {v(t[1])}"); rb(k,t[1],t[2])
    k(f"v_sqrt_f32 {v(t[1])}, {v(t[1])}"); rb(k,t[1],t[2])
    k(f"v_rcp_f32 {v(t[1])}, {v(t[1])}\nds_write_b32 {v(vst)}, {v(t[1])} offset:{RS}\ns_waitcnt lgkmcnt(0)\ns_barrier")
    rs=X; mn=X+16; XT=X+24; D0=X+64; D=R(20,2)
    k(f"v_lshlrev_b32 {v(t[0])}, 1, {v(vq)}")
    for j in range(4): k(f"ds_read_b128 {v(rs+4*j,4)}, {v(t[0])} offset:{RS+64*j}")
    for j in range(4): k(f"ds_read_b64 {v(mn+2*j,2)}, {v(vq)} offset:{MN+32*j}")
    for ks in range(2):
        for T in range(5):
            for rd in range(2): k(f"ds_read_b64_tr_b16 {v(XT+20*ks+4*T+2*rd,2)}, {v(vr)} offset:{(32*ks+16*rd)*160+32*T}")
    k("s_waitcnt lgkmcnt(15)")
    for j in range(16): k(f"v_mul_f32 {v(G+j)}, {v(G+j)}, {v(rs+j)}")
    for j in range(8): cvt(k,G+j,G+2*j,G+2*j+1)
    mf(k,D0,mn,G,None); mf(k,D0,mn+4,G+4,D0)
    k("s_waitcnt lgkmcnt(10)")
    for T in range(5): mf(k,D+4*T,XT+4*T,G,D0)
    k("s_waitcnt lgkmcnt(0)")
    for T in range(5): mf(k,D+4*T,XT+20+4*T,G+4,D+4*T)
    E=X; EM=X+16; O=X+20
    for i in range(4):
        cvt(k,Zs+4*i,D+i,D+4+i); cvt(k,Zs+4*i+1,D+8+i,D+12+i); cvt(k,Zs+4*i+2,D+16+i,"0")
    for i in range(4):
        for j in range(3): k(f"v_xor_b32_dpp {v(Zp+4*i+j)}, {v(Zs+4*i+j)}, {v(sg)} row_ror:8 row_mask:0xf bank_mask:0xf")
    for i in range(4): mf(k,E+4*i,MC+4*i,Zs+4*i,None)
    for i in range(4): mf(k,E+4*i,MS+4*i,Zp+4*i,E+4*i)
    for i in range(4): mf(k,EM,NC+4*i,Zs+4*i,EM if i else None); mf(k,EM,NS+4*i,Zp+4*i,EM)
    for r in range(4): cvt(k,O+2*r,E+r,E+4+r); cvt(k,O+2*r+1,E+8+r,E+12+r)
    k(f"buffer_store_dwordx4 {v(O,4)}, {v(vz)}, {s(SW,4)}, 0 offen{ST}\nbuffer_store_dwordx4 {v(O+4,4)}, {v(vz)}, {s(SW,4)}, 0 offen offset:16{ST}")
    cvt(k,O+8,EM,EM+1); cvt(k,O+9,EM+2,EM+3)
    k(f"buffer_store_dwordx2 {v(O+8,2)}, {v(vz)}, {s(SW,4)}, 0 offen offset:32{ST}")

YB=GP
def phaseB_pre(k,R,SR):
    B={}
    L=R(); q=R(); n=R(); t=[R() for _ in range(8)]
    vT,vE,vA,row,sa,sb=[R() for _ in range(6)]
    k(f"""v_and_b32 {v(L)}, 63, v0
    v_lshrrev_b32 {v(q)}, 4, {v(L)}
    v_and_b32 {v(n)}, 15, {v(L)}
    v_and_b32 {v(t[0])}, 7, {v(L)}
    v_lshrrev_b32 {v(t[1])}, 5, {v(L)}
    s_lshl_b32 s24, s21, 2
    s_cmp_eq_u32 s20, 0
    s_cbranch_scc1 B_special
    v_add_u32 {v(vT)}, s24, {v(t[0])}
    v_lshlrev_b32 {v(vT)}, 6, {v(vT)}
    v_mov_b32 {v(vE)}, 0
    v_cmp_gt_u32 vcc, 4, {v(t[0])}
    v_cndmask_b32_e64 {v(vA)}, 0, 1.0, vcc
    s_add_u32 s25, s24, s22
    s_lshl_b32 s25, s25, 6
    s_add_u32 s25, s25, s20
    s_sub_u32 s26, 2048, s25
    v_cmp_eq_u32 vcc, 0, {v(t[1])}
    v_mov_b32 {v(t[2])}, s26
    v_mov_b32 {v(t[3])}, s25
    v_mov_b32 {v(t[4])}, s22
    v_cndmask_b32 {v(row)}, {v(t[2])}, {v(t[3])}, vcc
    v_cndmask_b32_e64 {v(sa)}, 4, {v(t[4])}, vcc
    v_cndmask_b32_e64 {v(sb)}, {v(t[4])}, 4, vcc
    s_branch B_common
    B_special:""")
    def tau(d,j,a,b):
        k(f"""v_lshrrev_b32 {v(a)}, 1, {v(j)}
        v_add_u32 {v(a)}, s24, {v(a)}
        v_sub_u32 {v(b)}, 64, {v(a)}
        v_and_b32 {v(d)}, 1, {v(j)}
        v_cmp_eq_u32 vcc, 1, {v(d)}
        v_cndmask_b32 {v(d)}, {v(a)}, {v(b)}, vcc
        v_cmp_eq_u32 vcc, 64, {v(d)}
        v_cndmask_b32_e64 {v(d)}, {v(d)}, 32, vcc""")
    tau(vT,t[0],t[2],t[3])
    k(f"""v_and_b32 {v(vE)}, 1, {v(vT)}
    v_lshlrev_b32 {v(vE)}, 9, {v(vE)}
    v_lshlrev_b32 {v(vT)}, 5, {v(vT)}
    v_mov_b32 {v(vA)}, 0.5
    s_lshl_b32 s25, s22, 1
    v_add_u32 {v(sa)}, s25, {v(t[1])}""")
    tau(row,sa,t[2],t[3])
    k(f"""v_and_b32 {v(t[2])}, 31, {v(row)}
    v_xor_b32 {v(t[3])}, 1, {v(sa)}
    v_cmp_eq_u32 vcc, 0, {v(t[2])}
    v_cndmask_b32 {v(sb)}, {v(t[3])}, {v(sa)}, vcc
    v_lshlrev_b32 {v(row)}, 5, {v(row)}
    B_common:""")
    XR=R(10,2); WR=R(10,2); vx=R(); u=R()
    k(f"""v_and_b32 {v(u)}, 31, {v(L)}
    v_mul_u32_u24 {v(t[2])}, 40, {v(u)}
    v_mul_u32_u24 {v(vx)}, 1280, {v(row)}
    v_add_u32 {v(vx)}, {v(vx)}, {v(t[2])}""")
    for a,ad,sr in ((XR,vx,SX),(WR,t[2],SR)):
        k(f"buffer_load_dwordx4 {v(a,4)}, {v(ad)}, {s(sr,4)}, 0 offen\nbuffer_load_dwordx4 {v(a+4,4)}, {v(ad)}, {s(sr,4)}, 0 offen offset:16\nbuffer_load_dwordx2 {v(a+8,2)}, {v(ad)}, {s(sr,4)}, 0 offen offset:32")
    B.update(L=L,q=q,n=n,t=t,vT=vT,vE=vE,vA=vA,row=row,sa=sa,sb=sb,XR=XR,WR=WR,vx=vx,u=u)
    return B
def phaseB_dma(k,R,B,LD=""):
    vd=R(); L=B['L']
    k(f"s_mul_i32 s24, s22, 20480\nv_lshl_add_u32 {v(vd)}, {v(L)}, 4, s24\ns_mul_i32 s25, s20, {GP}")
    for kk in range(5):
        k(f"s_add_u32 m0, s24, {4096*kk}\ns_add_u32 s26, s25, {4096*kk}")
        for j in range(4): k(f"buffer_load_dwordx4 {v(vd)}, {s(SW,4)}, s26 offen offset:{1024*j}{LD} lds")
    k(f"s_mov_b32 m0, 81920\nv_lshlrev_b32 {v(vd)}, 4, {v(L)}\ns_add_u32 s26, s25, 81920\nbuffer_load_dwordx4 {v(vd)}, {s(SW,4)}, s26 offen{LD} lds")
def phaseB_const(k,R,B):
    L,q,n,t,vT,vE,vA,sa,sb,u,XR,WR=[B[x] for x in 'L q n t vT vE vA sa sb u XR WR'.split()]
    MB=R(8,2); C2=R(4,2); S2=R(4,2); tc=R(8,2); ts=R(8,2); vr=R(); vy=R(); vy2=R(); sg=R()
    k(f"""v_and_b32 {v(t[0])}, 1, {v(q)}
    v_lshrrev_b32 {v(t[1])}, 1, {v(q)}
    v_lshlrev_b32 {v(t[0])}, 4, {v(t[0])}
    v_lshl_add_u32 {v(t[0])}, {v(t[1])}, 3, {v(t[0])}
    v_lshrrev_b32 {v(t[1])}, 3, {v(n)}
    v_lshl_add_u32 {v(t[2])}, {v(t[1])}, 9, {v(vE)}
    v_mad_u32_u24 {v(t[2])}, {v(vT)}, {v(t[0])}, {v(t[2])}
    v_cvt_f32_u32 {v(t[3])}, {v(vT)}
    v_cvt_f32_u32 {v(t[2])}, {v(t[2])}
    v_mul_f32 {v(t[3])}, {fl(1/2048)}, {v(t[3])}
    v_mul_f32 {v(t[2])}, {fl(1/2048)}, {v(t[2])}
    v_bfe_u32 {v(t[4])}, {v(L)}, 2, 2
    v_add_u32 {v(t[4])}, {v(t[4])}, {v(t[0])}
    v_mul_u32_u24 {v(vr)}, 1288, {v(t[4])}
    v_and_b32 {v(t[4])}, 3, {v(L)}
    v_mul_u32_u24 {v(t[4])}, 160, {v(t[4])}
    s_mul_i32 s24, s22, 40
    v_add3_u32 {v(vr)}, {v(vr)}, {v(t[4])}, s24
    v_and_b32 {v(t[4])}, 7, {v(L)}
    v_mul_u32_u24 {v(t[4])}, 2576, {v(t[4])}
    v_lshl_add_u32 {v(t[4])}, {v(t[1])}, 6, {v(t[4])}
    v_lshl_add_u32 {v(t[4])}, {v(q)}, 4, {v(t[4])}
    s_lshl_b32 s24, s22, 9
    s_add_u32 s24, s24, {YB}
    v_add_u32 {v(vy)}, s24, {v(t[4])}
    s_lshl_b32 s24, s22, 7
    s_add_u32 s24, s24, {YB+2048}
    v_add_u32 {v(vy2)}, s24, {v(t[4])}
    v_bfrev_b32 {v(sg)}, 1""")
    def trig(e,p0,ks,amp,dc,dsn):
        for j in range(8): k(f"v_fmamk_f32 {v(tc+j)}, {v(e)}, {fl(ks[j])}, {v(p0)}")
        for j in range(8): k(f"v_fract_f32 {v(tc+j)}, {v(tc+j)}")
        for j in range(8): k(f"v_sin_f32 {v(ts+j)}, {v(tc+j)}")
        for j in range(8): k(f"v_cos_f32 {v(tc+j)}, {v(tc+j)}")
        if amp is not None:
            for j in range(8): k(f"v_mul_f32 {v(ts+j)}, {v(amp)}, {v(ts+j)}")
            for j in range(8): k(f"v_mul_f32 {v(tc+j)}, {v(amp)}, {v(tc+j)}")
        for j in range(4): cvt(k,dsn+j,ts+2*j,ts+2*j+1)
        for j in range(4): cvt(k,dc+j,tc+2*j,tc+2*j+1)
    trig(t[3],t[2],list(range(8)),vA,MB,MB+4)
    k(f"""v_cvt_f32_u32 {v(t[3])}, {v(n)}
    v_cvt_f32_u32 {v(t[2])}, {v(q)}
    v_mul_f32 {v(t[3])}, {fl(1/32)}, {v(t[3])}
    v_mul_f32 {v(t[2])}, 4.0, {v(t[2])}
    v_mul_f32 {v(t[2])}, {v(t[3])}, {v(t[2])}""")
    trig(t[3],t[2],[0,1,2,3,16,17,18,19],None,C2,S2)
    n0,n1,m0_,m1,m2=[R() for _ in range(5)]
    k(f"""v_mul_u32_u24 {v(t[0])}, 2576, {v(sa)}
    v_lshl_add_u32 {v(n0)}, {v(u)}, 2, {v(t[0])}
    v_add_u32 {v(n0)}, {YB}, {v(n0)}
    v_add_u32 {v(n1)}, 128, {v(n0)}
    v_mul_u32_u24 {v(t[0])}, 2576, {v(sb)}
    v_add_u32 {v(t[0])}, {YB}, {v(t[0])}
    v_sub_u32 {v(t[1])}, 31, {v(u)}
    v_lshl_add_u32 {v(m0_)}, {v(t[1])}, 2, {v(t[0])}
    v_add_u32 {v(m1)}, 128, {v(m0_)}
    v_add_u32 {v(t[1])}, 1, {v(t[1])}
    v_and_b32 {v(t[1])}, 31, {v(t[1])}
    v_lshl_add_u32 {v(m2)}, {v(t[1])}, 2, {v(t[0])}""")
    B.update(MB=MB,C2=C2,S2=S2,vr=vr,vy=vy,vy2=vy2,sg=sg,n0=n0,n1=n1,m0=m0_,m1=m1,m2=m2)
def red32(k,regs_,tmp,op="v_add_f32"):
    for r in (8,4,2,1):
        for a in regs_: k(f"{op}_dpp {v(a)}, {v(a)}, {v(a)} row_ror:{r} row_mask:0xf bank_mask:0xf")
    for a,b in zip(regs_,tmp): k(f"v_mov_b32 {v(b)}, {v(a)}")
    for a,b in zip(regs_,tmp): k(f"v_permlane16_swap_b32 {v(a)}, {v(b)}")
    for a,b in zip(regs_,tmp): k(f"{op} {v(a)}, {v(a)}, {v(b)}")
def phaseB_unpack(k,R,B):
    XR,WR,t=B['XR'],B['WR'],B['t']
    XF=R(20,2); WF=R(20,2); sw=R(2,2)
    k("s_mov_b32 s24, 0xffff0000")
    for a,f in ((XR,XF),(WR,WF)):
        for b4 in range(5):
            k(f"v_lshlrev_b32 {v(f+4*b4)}, 16, {v(a+2*b4)}\nv_lshlrev_b32 {v(f+4*b4+1)}, 16, {v(a+2*b4+1)}\nv_and_b32 {v(f+4*b4+2)}, s24, {v(a+2*b4)}\nv_and_b32 {v(f+4*b4+3)}, s24, {v(a+2*b4+1)}")
    k(f"v_pk_add_f32 {v(sw,2)}, {v(WF,2)}, {v(WF+2,2)}")
    for j in range(2,10): k(f"v_pk_add_f32 {v(sw,2)}, {v(sw,2)}, {v(WF+2*j,2)}")
    k(f"v_add_f32 {v(sw)}, {v(sw)}, {v(sw+1)}"); red32(k,[sw],[t[0]])
    B.update(XF=XF,WF=WF,sw=sw)
def phaseB_main(k,R,B,ST=""):
    MB,C2,S2,vr,vy,vy2,sg,t,XF,WF,sw,vx,row,u=[B[x] for x in 'MB C2 S2 vr vy vy2 sg t XF WF sw vx row u'.split()]
    ZT=R(80,2); D=R(40,2); P2=ZT+40
    def rd_(r_):
        for ks in range(2):
            for xy in range(2):
                for rd in range(2): k(f"ds_read_b64_tr_b16 {v(ZT+16*r_+8*ks+4*xy+2*rd,2)}, {v(vr)} offset:{(32*ks+4*rd)*1288+640*xy+8*r_}")
    rd_(0); rd_(1)
    for r_ in range(5):
        k(f"s_waitcnt lgkmcnt({8 if r_<4 else 0})")
        for ks in range(2):
            for xy in range(2): mf(k,D+8*r_+4*xy,ZT+16*r_+8*ks+4*xy,MB+4*ks,D+8*r_+4*xy if ks else None)
        if r_+2<5: rd_(r_+2)
    U=ZT; F=ZT+20
    for r_ in range(5):
        for j in range(4): cvt(k,U+4*r_+j,D+8*r_+2*j,D+8*r_+2*j+1)
        for j in range(4): k(f"v_xor_b32 {v(P2+4*r_+j)}, {v(sg)}, {v(U+4*r_+j)}")
        for j in range(4): k(f"v_mov_b32_dpp {v(P2+4*r_+j)}, {v(U+4*r_+j)} row_ror:8 row_mask:0xf bank_mask:0x3")
        for j in range(4): k(f"v_xor_b32_dpp {v(U+4*r_+j)}, {v(U+4*r_+j)}, {v(sg)} row_ror:8 row_mask:0xf bank_mask:0xc")
        if r_: mf(k,F+4*r_-4,C2,U+4*r_-4,None); mf(k,F+4*r_-4,S2,P2+4*r_-4,F+4*r_-4)
    mf(k,F+16,C2,U+16,None); mf(k,F+16,S2,P2+16,F+16)
    for r_ in range(4): k(f"ds_write_b128 {v(vy)}, {v(F+4*r_,4)} offset:{128*r_}")
    k(f"ds_write_b128 {v(vy2)}, {v(F+16,4)}\ns_waitcnt lgkmcnt(0)\ns_barrier")
    YN=D; YM=D+20
    for b4 in range(5):
        e=4*b4
        k(f"ds_read2st64_b32 {v(YN+e,2)}, {v(B['n0'])} offset0:{e//2} offset1:{e//2+1}\nds_read2st64_b32 {v(YN+e+2,2)}, {v(B['n1'])} offset0:{e//2} offset1:{e//2+1}")
        if b4==0: k(f"ds_read_b32 {v(YM)}, {v(B['m2'])}\nds_read_b32 {v(YM+1)}, {v(B['m0'])} offset:{128*18}")
        else: k(f"ds_read2st64_b32 {v(YM+e,2)}, {v(B['m0'])} offset0:{(20-e)//2} offset1:{(18-e)//2}")
        k(f"ds_read2st64_b32 {v(YM+e+2,2)}, {v(B['m1'])} offset0:{(18-e)//2} offset1:{(16-e)//2}")
    a1=ZT; a2=ZT+2; a3=ZT+4; H=XF
    for b4 in range(5):
        k(f"s_waitcnt lgkmcnt({min(15,16-4*b4)})")
        for e in (4*b4,4*b4+2): k(f"v_pk_add_f32 {v(YN+e,2)}, {v(YN+e,2)}, {v(YM+e,2)}")
        for e in (4*b4,4*b4+2): k(f"v_pk_add_f32 {v(H+e,2)}, {v(H+e,2)}, {v(YN+e,2)}")
        for e in (4*b4,4*b4+2):
            if e==0: k(f"v_pk_mul_f32 {v(a2,2)}, {v(H,2)}, {v(H,2)}\nv_pk_mul_f32 {v(a3,2)}, {v(H,2)}, {v(WF,2)}")
            else: k(f"v_pk_fma_f32 {v(a2,2)}, {v(H+e,2)}, {v(H+e,2)}, {v(a2,2)}\nv_pk_fma_f32 {v(a3,2)}, {v(H+e,2)}, {v(WF+e,2)}, {v(a3,2)}")
            if e==2: k(f"v_pk_add_f32 {v(a1,2)}, {v(H,2)}, {v(H+2,2)}")
            elif e>2: k(f"v_pk_add_f32 {v(a1,2)}, {v(a1,2)}, {v(H+e,2)}")
    for a in (a1,a2,a3): k(f"v_add_f32 {v(a)}, {v(a)}, {v(a+1)}")
    red32(k,[a1,a2,a3],t[0:3])
    k1=ZT+6; k0=ZT+8; sp=ZT+10; O=ZT+12
    k(f"""v_mul_f32 {v(sp+1)}, {fl(1/640)}, {v(a1)}
    v_mul_f32 {v(a2)}, {fl(1/640)}, {v(a2)}
    v_fma_f32 {v(a2)}, -{v(sp+1)}, {v(sp+1)}, {v(a2)}
    v_max_f32 {v(a2)}, 0, {v(a2)}""")
    rb(k,a2,t[0]); k(f"v_add_f32 {v(a2)}, {fl(1e-5)}, {v(a2)}"); rb(k,a2,t[0]); k(f"v_sqrt_f32 {v(a2)}, {v(a2)}"); rb(k,a2,t[0])
    k(f"""v_rcp_f32 {v(a2)}, {v(a2)}
    v_fma_f32 {v(a3)}, -{v(sp+1)}, {v(sw)}, {v(a3)}
    v_add_f32 {v(k1)}, 1.0, {v(a2)}
    v_mul_f32 {v(k0)}, {v(sp+1)}, {v(a2)}
    v_rcp_f32 {v(sp)}, {v(k1)}
    v_mul_f32 {v(a3)}, {v(a3)}, {v(a2)}""")
    for j in range(10): k(f"v_pk_fma_f32 {v(H+2*j,2)}, {v(H+2*j,2)}, {v(k1,2)}, {v(k0,2)} op_sel_hi:[1,0,0] neg_lo:[0,0,1] neg_hi:[0,0,1]")
    for b4 in range(5): cvt(k,O+2*b4,H+4*b4,H+4*b4+2); cvt(k,O+2*b4+1,H+4*b4+1,H+4*b4+3)
    k(f"""buffer_store_dwordx4 {v(O,4)}, {v(vx)}, {s(SO,4)}, 0 offen{ST}
    buffer_store_dwordx4 {v(O+4,4)}, {v(vx)}, {s(SO,4)}, 0 offen offset:16{ST}
    buffer_store_dwordx2 {v(O+8,2)}, {v(vx)}, {s(SO,4)}, 0 offen offset:32{ST}
    v_mul_f32 {v(sp)}, {v(sp)}, {v(a2)}
    v_ashrrev_i32 {v(t[0])}, 31, {v(a3)}
    v_or_b32 {v(t[0])}, {v(sg)}, {v(t[0])}
    v_xor_b32 {v(t[0])}, {v(t[0])}, {v(a3)}
    v_and_b32 {v(t[0])}, 0xfffff800, {v(t[0])}
    v_sub_u32 {v(t[1])}, 0x7ff, {v(row)}
    v_or_b32 {v(t[0])}, {v(t[0])}, {v(t[1])}
    v_lshlrev_b32 {v(t[2])}, 2, {v(row)}
    v_lshlrev_b32 {v(t[3])}, 3, {v(row)}
    s_mov_b32 s24, {WS_KEY}
    s_mov_b32 s25, {WS_ST}
    s_mov_b32 exec_lo, 1
    s_mov_b32 exec_hi, 1
    buffer_store_dword {v(t[0])}, {v(t[2])}, {s(SW,4)}, s24 offen{ST}
    buffer_store_dwordx2 {v(sp,2)}, {v(t[3])}, {s(SW,4)}, s25 offen{ST}
    s_mov_b64 exec, -1""")
```

```python
from phases import *
SG,SU,SD=44,48,52
CW=0; CD=40960; CRED=CD+24576; CT2=CRED+8192; C_LDS=CT2+64
def merge2(k,a1,a2,b1,b2,t):
    k(f"v_max_u32 {v(t)}, {v(a2)}, {v(b2)}\nv_med3_u32 {v(a2)}, {v(a1)}, {v(b1)}, {v(t)}\nv_max_u32 {v(a1)}, {v(a1)}, {v(b1)}")
def phaseC_dma(k,R,base=0):
    L=R(); t=[R() for _ in range(4)]
    k(f"""v_and_b32 {v(L)}, 63, v0
    v_lshrrev_b32 {v(t[0])}, 1, {v(L)}
    v_and_b32 {v(t[1])}, 0x13, {v(t[0])}
    v_and_b32 {v(t[2])}, 4, {v(t[0])}
    v_lshl_or_b32 {v(t[1])}, {v(t[2])}, 1, {v(t[1])}
    v_and_b32 {v(t[2])}, 8, {v(t[0])}
    v_lshrrev_b32 {v(t[2])}, 1, {v(t[2])}
    v_or_b32 {v(t[1])}, {v(t[1])}, {v(t[2])}
    v_mul_u32_u24 {v(t[1])}, 3072, {v(t[1])}
    v_and_b32 {v(t[2])}, 1, {v(L)}
    v_lshl_add_u32 {v(t[1])}, {v(t[2])}, 4, {v(t[1])}
    s_mul_i32 s24, s22, {160*3072}
    s_lshl_b32 s25, s23, 5
    s_add_u32 s24, s24, s25
    s_mul_i32 s25, s22, 5120""")
    for ks in range(5):
        for m,sr in ((0,SG),(1,SU)):
            k(f"s_add_u32 m0, s25, {base+CW+20480*m+1024*ks}\ns_add_u32 s26, s24, {98304*ks}\nbuffer_load_dwordx4 {v(t[1])}, {s(sr,4)}, s26 offen lds")
    k(f"s_lshl_b32 s25, s22, 6\nv_add_u32 {v(t[0])}, s25, {v(L)}\ns_mul_i32 s24, s23, 20480\ns_lshl_b32 s25, s22, 10")
    for j in range(6):
        k(f"""v_mul_u32_u24 {v(t[1])}, 51151, {v(t[0])}
        v_lshrrev_b32 {v(t[1])}, 22, {v(t[1])}
        v_mul_u32_u24 {v(t[2])}, 82, {v(t[1])}
        v_sub_u32 {v(t[2])}, {v(t[0])}, {v(t[2])}
        v_min_u32 {v(t[2])}, 79, {v(t[2])}
        v_min_u32 {v(t[1])}, 15, {v(t[1])}
        v_mul_u32_u24 {v(t[1])}, 1280, {v(t[1])}
        v_lshl_add_u32 {v(t[1])}, {v(t[2])}, 4, {v(t[1])}
        s_add_u32 m0, s25, {base+CD+4096*j}
        v_add_u32 {v(t[0])}, 256, {v(t[0])}
        buffer_load_dwordx4 {v(t[1])}, {s(SD,4)}, s24 offen lds""")
def phaseC_keys(k,R,LD=""):
    KY=R(8,2); a=R()
    k(f"v_lshlrev_b32 {v(a)}, 5, v0\ns_mov_b32 s24, {WS_KEY}\nbuffer_load_dwordx4 {v(KY,4)}, {v(a)}, {s(SW,4)}, s24 offen{LD}\nbuffer_load_dwordx4 {v(KY+4,4)}, {v(a)}, {s(SW,4)}, s24 offen offset:16{LD}")
    return KY
def phaseC_main(k,R,KY,nafter,base=0,LD="",ST=""):
    L=R(); q=R(); n=R(); t=[R() for _ in range(8)]; BO=R(20,2); vr=R(); vd=R(); vp=R(); vred=R(); vred2=R()
    k(f"""v_and_b32 {v(L)}, 63, v0
    v_lshrrev_b32 {v(q)}, 4, {v(L)}
    v_and_b32 {v(n)}, 15, {v(L)}
    v_lshrrev_b32 {v(t[0])}, 1, {v(q)}
    v_and_b32 {v(t[1])}, 1, {v(q)}
    v_lshlrev_b32 {v(t[0])}, 9, {v(t[0])}
    v_lshl_add_u32 {v(t[0])}, {v(t[1])}, 7, {v(t[0])}
    v_lshl_add_u32 {v(t[0])}, {v(n)}, 3, {v(t[0])}
    s_mul_i32 s24, s22, 5120
    s_add_u32 s24, s24, {base+CW}
    v_add_u32 {v(vr)}, s24, {v(t[0])}
    v_lshrrev_b32 {v(t[0])}, 2, {v(L)}
    v_mul_u32_u24 {v(t[0])}, 1312, {v(t[0])}
    v_and_b32 {v(t[1])}, 3, {v(L)}
    v_lshl_add_u32 {v(t[0])}, {v(t[1])}, 3, {v(t[0])}
    s_mul_i32 s24, s22, 320
    s_add_u32 s25, s24, {base+CD}
    v_add_u32 {v(vd)}, s25, {v(t[0])}
    v_and_b32 {v(t[1])}, 1, {v(L)}
    v_cmp_eq_u32 s[34:35], 1, {v(t[1])}
    v_mul_u32_u24 {v(t[1])}, 2560, {v(t[1])}
    v_lshl_add_u32 {v(t[1])}, {v(q)}, 4, {v(t[1])}
    s_mul_i32 s25, s22, 640
    s_mul_i32 s26, s23, 5120
    s_add_u32 s25, s25, s26
    s_add_u32 s25, s25, {WS_P}
    v_add_u32 {v(vp)}, s25, {v(t[1])}
    v_lshlrev_b32 {v(vred2)}, 4, {v(L)}
    v_add_u32 {v(vred2)}, {base+CRED}, {v(vred2)}
    s_lshl_b32 s25, s22, 11
    v_add_u32 {v(vred)}, s25, {v(vred2)}
    v_lshl_add_u32 {v(t[7])}, {v(q)}, 4, s24
    s_lshl_b32 s25, s22, 3
    s_add_u32 s25, s25, {base+CT2}
    v_mov_b32 {v(t[6])}, s25""")
    for j in range(20): k(f"v_mov_b32 {v(BO+j)}, 0x3f803f80")
    stamp(k,1); k(f"s_waitcnt vmcnt({nafter})"); stamp(k,2)
    for j in range(4): k(f"v_max_u32 {v(t[0])}, {v(KY+2*j)}, {v(KY+2*j+1)}\nv_min_u32 {v(KY+2*j+1)}, {v(KY+2*j)}, {v(KY+2*j+1)}\nv_mov_b32 {v(KY+2*j)}, {v(t[0])}")
    merge2(k,KY,KY+1,KY+2,KY+3,t[0]); merge2(k,KY+4,KY+5,KY+6,KY+7,t[1]); merge2(k,KY,KY+1,KY+4,KY+5,t[0])
    for r in (8,4,2,1):
        k(f"v_mov_b32_dpp {v(KY+2)}, {v(KY)} row_ror:{r} row_mask:0xf bank_mask:0xf\nv_mov_b32_dpp {v(KY+3)}, {v(KY+1)} row_ror:{r} row_mask:0xf bank_mask:0xf")
        merge2(k,KY,KY+1,KY+2,KY+3,t[0])
    for p in (16,32):
        k(f"v_mov_b32 {v(KY+2)}, {v(KY)}\nv_mov_b32 {v(KY+3)}, {v(KY+1)}\nv_permlane{p}_swap_b32 {v(KY)}, {v(KY+2)}\nv_permlane{p}_swap_b32 {v(KY+1)}, {v(KY+3)}")
        merge2(k,KY,KY+1,KY+2,KY+3,t[0])
    k(f"""ds_write_b64 {v(t[6])}, {v(KY,2)}
    v_mov_b32 {v(t[6])}, {base+CT2}
    s_waitcnt lgkmcnt(0)
    s_barrier
    ds_read_b128 {v(KY,4)}, {v(t[6])}
    ds_read_b128 {v(KY+4,4)}, {v(t[6])} offset:16
    s_waitcnt lgkmcnt(0)""")
    merge2(k,KY,KY+1,KY+2,KY+3,t[0]); merge2(k,KY+4,KY+5,KY+6,KY+7,t[1]); merge2(k,KY,KY+1,KY+4,KY+5,t[0])
    key=KY+2; row=KY+3; sp=KY+4
    k(f"""v_cndmask_b32_e64 {v(key)}, {v(KY)}, {v(KY+1)}, s[34:35]
    v_and_b32 {v(row)}, 0x7ff, {v(key)}
    v_sub_u32 {v(row)}, 0x7ff, {v(row)}
    v_mul_u32_u24 {v(t[0])}, 1280, {v(row)}
    v_add_u32 {v(t[0])}, {v(t[0])}, {v(t[7])}
    v_lshlrev_b32 {v(t[1])}, 3, {v(row)}
    s_mov_b32 s24, {WS_ST}
    s_mov_b32 s36, 0x00030003
    s_mov_b32 s37, 0x00030003
    s_mov_b64 exec, s[36:37]""")
    for ks in range(5): k(f"buffer_load_dwordx4 {v(BO+4*ks,4)}, {v(t[0])}, {s(SO,4)}, 0 offen offset:{64*ks}{LD}")
    k(f"buffer_load_dwordx2 {v(sp,2)}, {v(t[1])}, {s(SW,4)}, s24 offen{LD}\ns_mov_b64 exec, -1")
    k(f"""v_ashrrev_i32 {v(t[2])}, 31, {v(key)}
    v_not_b32 {v(t[2])}, {v(t[2])}
    v_or_b32 {v(t[2])}, 0x80000000, {v(t[2])}
    v_xor_b32 {v(t[2])}, {v(t[2])}, {v(key)}
    v_mul_f32 {v(t[2])}, {fl(-1.4426950408889634)}, {v(t[2])}
    v_exp_f32 {v(t[2])}, {v(t[2])}
    v_add_f32 {v(t[2])}, 1.0, {v(t[2])}
    v_rcp_f32 {v(t[2])}, {v(t[2])}""")
    WT=R(40,2); DG=R(4,2); DU=R(4,2); sig=t[2]
    k("s_waitcnt vmcnt(12)")
    for ks in range(5):
        for m in range(2):
            for rd in range(2): k(f"ds_read_b64_tr_b16 {v(WT+8*ks+4*m+2*rd,2)}, {v(vr)} offset:{20480*m+1024*ks+256*rd}")
    for ks in range(5):
        k(f"s_waitcnt vmcnt({5-ks}) lgkmcnt({min(15,16-4*ks)})")
        mf(k,DG,WT+8*ks,BO+4*ks,DG if ks else None); mf(k,DU,WT+8*ks+4,BO+4*ks,DU if ks else None)
    k(f"s_waitcnt vmcnt(0)\nv_xor_b32 {v(sp+1)}, 0x80000000, {v(sp+1)}")
    for a in (DG,DU):
        for j in range(4): k(f"v_fmac_f32_dpp {v(a+j)}, {v(a+j)}, {v(sp+1)} row_newbcast:2 row_mask:0xf bank_mask:0xf")
    k(f"ds_write_b128 {v(vred)}, {v(DG,4)} \nds_write_b128 {v(vred)}, {v(DU,4)} offset:1024\ns_waitcnt lgkmcnt(0)\ns_barrier")
    stamp(k,3)
    PR=WT; DT=BO
    for w in range(4):
        for m in range(2): k(f"ds_read_b128 {v(PR+16*m+4*w,4)}, {v(vred2)} offset:{2048*w+1024*m}")
    for N in range(10): k(f"ds_read_b64_tr_b16 {v(DT+2*N,2)}, {v(vd)} offset:{32*N}")
    k("s_waitcnt lgkmcnt(10)")
    for m in range(2):
        for h in range(2):
            a=PR+16*m+2*h
            k(f"v_pk_add_f32 {v(a,2)}, {v(a,2)}, {v(a+4,2)}\nv_pk_add_f32 {v(a+8,2)}, {v(a+8,2)}, {v(a+12,2)}\nv_pk_add_f32 {v(a,2)}, {v(a,2)}, {v(a+8,2)}\nv_pk_mul_f32 {v(a,2)}, {v(a,2)}, {v(sp,2)} op_sel_hi:[1,0]")
    g=PR; u=PR+16; e=PR+4
    for j in range(4): k(f"v_mul_f32 {v(e+j)}, {fl(-1.4426950408889634)}, {v(g+j)}")
    for j in range(4): k(f"v_exp_f32 {v(e+j)}, {v(e+j)}")
    for j in range(4): k(f"v_mul_f32 {v(g+j)}, {v(g+j)}, {v(u+j)}")
    for j in range(4): k(f"v_add_f32 {v(e+j)}, 1.0, {v(e+j)}")
    for j in range(4): k(f"v_rcp_f32 {v(e+j)}, {v(e+j)}")
    for j in range(4): k(f"v_mul_f32 {v(g+j)}, {v(g+j)}, {v(e+j)}")
    AC=KY+6; cvt(k,AC,g,g+1); cvt(k,AC+1,g+2,g+3)
    k("s_waitcnt lgkmcnt(0)")
    for N in range(10): mf(k,WT+4*N,DT+2*N,AC,None,n=2,op="16x16x16")
    k("s_mov_b64 exec, s[36:37]")
    for N in range(10): k(f"buffer_store_dwordx4 {v(WT+4*N,4)}, {v(vp)}, {s(SW,4)}, 0 offen offset:{64*N}{ST}")
    k(f"""s_or_b32 s24, s23, s22
    s_cmp_lg_u32 s24, 0
    s_cbranch_scc1 C_nosel
    s_mov_b64 exec, 3
    v_lshlrev_b32 {v(t[0])}, 2, {v(L)}
    s_mov_b32 s24, {WS_SEL}
    buffer_store_dword {v(row)}, {v(t[0])}, {s(SW,4)}, s24 offen{ST}
    buffer_store_dword {v(sig)}, {v(t[0])}, {s(SW,4)}, s24 offen offset:8{ST}
    C_nosel:
    s_mov_b64 exec, -1""")
def phaseD(k,R):
    P=R(24,2); a=R(); t=[R() for _ in range(4)]; O=R(2,2)
    k(f"""s_add_u32 s28, s6, {WS_SEL}
    s_addc_u32 s29, s7, 0
    s_load_dwordx4 s[24:27], s[28:29], 0
    v_lshrrev_b32 {v(a)}, 2, v0
    v_mul_u32_u24 {v(a)}, 5120, {v(a)}
    v_and_b32 {v(t[0])}, 3, v0
    v_lshl_add_u32 {v(a)}, {v(t[0])}, 4, {v(a)}
    s_lshl_b32 s30, s2, 6
    s_add_u32 s30, s30, {WS_P}""")
    for i in range(6): k(f"s_add_u32 s31, s30, {81920*i}\nbuffer_load_dwordx4 {v(P+4*i,4)}, {v(a)}, {s(SW,4)}, s31 offen")
    k(f"""s_waitcnt lgkmcnt(0)
    s_cmp_ge_u32 s2, 40
    s_cselect_b32 s24, s25, s24
    s_cselect_b32 s26, s27, s26
    s_cselect_b32 s31, 40, 0
    s_sub_u32 s31, s2, s31
    s_lshl_b32 s31, s31, 5
    s_and_b32 s24, s24, 0x7ff
    s_mul_i32 s24, s24, 1280
    s_add_u32 s24, s24, s31
    v_lshlrev_b32 {v(t[1])}, 3, {v(t[0])}
    buffer_load_dwordx2 {v(O,2)}, {v(t[1])}, {s(SO,4)}, s24 offen""")
    for i in range(1,6):
        k(f"s_waitcnt vmcnt({6-i})\nv_pk_add_f32 {v(P,2)}, {v(P,2)}, {v(P+4*i,2)}\nv_pk_add_f32 {v(P+2,2)}, {v(P+2,2)}, {v(P+4*i+2,2)}")
    for r in (4,8):
        for j in range(4): k(f"v_add_f32_dpp {v(P+j)}, {v(P+j)}, {v(P+j)} row_ror:{r} row_mask:0xf bank_mask:0xf")
    for p in (16,32):
        for j in range(4): k(f"v_mov_b32 {v(P+4+j)}, {v(P+j)}")
        for j in range(4): k(f"v_permlane{p}_swap_b32 {v(P+j)}, {v(P+4+j)}")
        for j in range(4): k(f"v_add_f32 {v(P+j)}, {v(P+j)}, {v(P+4+j)}")
    k(f"""s_waitcnt vmcnt(0)
    v_lshlrev_b32 {v(P+4)}, 16, {v(O)}
    v_and_b32 {v(P+5)}, 0xffff0000, {v(O)}
    v_lshlrev_b32 {v(P+6)}, 16, {v(O+1)}
    v_and_b32 {v(P+7)}, 0xffff0000, {v(O+1)}""")
    for j in range(4): k(f"v_fmac_f32 {v(P+4+j)}, s26, {v(P+j)}")
    cvt(k,O,P+4,P+5); cvt(k,O+1,P+6,P+7)
    k(f"s_mov_b64 exec, 15\nbuffer_store_dwordx2 {v(O,2)}, {v(t[1])}, {s(SO,4)}, s24 offen")
```

```python
import sys
from phases2 import *
def head(k,n,lab): k(f"s_cmp_ge_u32 s2, {n}\ns_cbranch_scc1 {lab}")
def wave(k): k("v_lshrrev_b32 v1, 6, v0\nv_readfirstlane_b32 s22, v1")
ks=[]
k=K(); R=Alloc(2); head(k,256,"A_end")
k("s_load_dwordx2 s[4:5], s[0:1], 0\ns_load_dwordx2 s[6:7], s[0:1], 96\ns_and_b32 s20, s2, 31\ns_lshr_b32 s21, s2, 5"); wave(k)
k("s_waitcnt lgkmcnt(0)"); srd(k,SX,4,XB); srd(k,SW,6,WS_END)
phaseA(k,R); k("A_end:\ns_endpgm"); ks.append(("pa_kernel",256,256,10624,R.hi,k.l))
k=K(); R=Alloc(2); head(k,256,"B_end")
k("s_load_dwordx2 s[4:5], s[0:1], 0\ns_load_dwordx2 s[6:7], s[0:1], 96\ns_load_dwordx2 s[42:43], s[0:1], 80\ns_load_dwordx2 s[40:41], s[0:1], 48\ns_and_b32 s20, s2, 31\ns_lshr_b32 s21, s2, 5"); wave(k)
k("s_waitcnt lgkmcnt(0)"); srd(k,SX,4,XB); srd(k,SW,6,WS_END); srd(k,SO,42,XB); srd(k,44,40,1280)
B=phaseB_pre(k,R,44); phaseB_dma(k,R,B); phaseB_const(k,R,B); k("s_waitcnt vmcnt(21)"); phaseB_unpack(k,R,B)
k("s_waitcnt vmcnt(0)\ns_barrier"); phaseB_main(k,R,B); k("B_end:\ns_endpgm"); ks.append(("pb_kernel",256,256,YB+20608,R.hi,k.l))
k=K(); R=Alloc(2); head(k,96,"C_end")
k("s_load_dwordx2 s[6:7], s[0:1], 96\ns_load_dwordx2 s[42:43], s[0:1], 80\ns_load_dwordx4 s[56:59], s[0:1], 56\ns_load_dwordx2 s[60:61], s[0:1], 72\ns_and_b32 s23, s2, 7\ns_mul_i32 s23, s23, 12\ns_lshr_b32 s21, s2, 3\ns_add_u32 s23, s23, s21"); wave(k)
k("s_waitcnt lgkmcnt(0)"); srd(k,SW,6,WS_END); KY=phaseC_keys(k,R); srd(k,SO,42,XB); srd(k,SG,56,1966080); srd(k,SU,58,1966080); srd(k,SD,60,1966080)
phaseC_dma(k,R); phaseC_main(k,R,KY,16); k("C_end:\ns_endpgm"); ks.append(("pc_kernel",96,256,C_LDS,R.hi,k.l))
k=K(); R=Alloc(2); head(k,80,"D_end")
k("s_load_dwordx2 s[6:7], s[0:1], 96\ns_load_dwordx2 s[42:43], s[0:1], 80\ns_waitcnt lgkmcnt(0)"); srd(k,SW,6,WS_END); srd(k,SO,42,XB)
phaseD(k,R); k("D_end:\ns_endpgm"); ks.append(("pd_kernel",80,64,0,R.hi,k.l))
open(sys.argv[1],'w').write(build(ks)); print([ (x[0],x[4],len(x[5])) for x in ks])
```

```python
from phases2 import *
WB=YB+20608; F_LDS=WB+49152; RED=0; T2=8192; SDB=48; SPIN=1<<17
def spin_init(k): k(f"s_mov_b32 s42, {SPIN}")
def spin_back(k,lab): k(f"s_sub_u32 s42, s42, 1\ns_cselect_b64 vcc, 0, vcc\ns_cbranch_vccnz {lab}")
def dma_perm(k,L,t,pitch):
    k(f"""v_lshrrev_b32 {v(t[0])}, 1, {v(L)}
    v_and_b32 {v(t[1])}, 0x13, {v(t[0])}
    v_and_b32 {v(t[2])}, 4, {v(t[0])}
    v_lshl_or_b32 {v(t[1])}, {v(t[2])}, 1, {v(t[1])}
    v_and_b32 {v(t[2])}, 8, {v(t[0])}
    v_lshrrev_b32 {v(t[2])}, 1, {v(t[2])}
    v_or_b32 {v(t[1])}, {v(t[1])}, {v(t[2])}
    v_mul_u32_u24 {v(t[1])}, {pitch}, {v(t[1])}
    v_and_b32 {v(t[2])}, 1, {v(L)}
    v_lshl_add_u32 {v(t[1])}, {v(t[2])}, 4, {v(t[1])}""")
def loader(k,NB):
    R=Alloc(2); L=R(); t=[R() for _ in range(6)]; M=R(4,2); row=R()
    k(f"""s_load_dwordx4 s[56:59], s[0:1], 56
    s_load_dwordx2 s[60:61], s[0:1], 72
    v_and_b32 {v(L)}, 63, v0
    v_lshrrev_b32 {v(t[0])}, 4, {v(L)}
    s_lshl_b32 s24, s21, 2
    v_add_u32 {v(t[0])}, s24, {v(t[0])}
    s_cmp_eq_u32 s20, 0
    s_cselect_b32 s25, 5, 6
    v_lshlrev_b32 {v(t[0])}, s25, {v(t[0])}
    v_add_u32 {v(t[0])}, s20, {v(t[0])}
    v_sub_u32 {v(t[1])}, 2048, {v(t[0])}
    v_bfe_u32 {v(t[2])}, {v(L)}, 3, 1
    v_cmp_eq_u32 vcc, 1, {v(t[2])}
    v_cndmask_b32 {v(row)}, {v(t[0])}, {v(t[1])}, vcc
    v_mov_b32 {v(t[1])}, 1024
    v_cmp_eq_u32 vcc, 2048, {v(row)}
    v_cndmask_b32 {v(row)}, {v(row)}, {v(t[1])}, vcc
    v_and_b32 {v(t[2])}, 7, {v(L)}
    v_mul_u32_u24 {v(t[0])}, 1280, {v(row)}
    v_lshl_add_u32 {v(t[0])}, {v(t[2])}, 4, {v(t[0])}
    v_lshlrev_b32 {v(t[1])}, 3, {v(row)}
    v_lshlrev_b32 {v(t[3])}, 2, {v(L)}
    v_mov_b32 {v(t[4])}, 0""")
    for j in range(4): k(f"v_mov_b32 {v(M+j)}, -1")
    for i in range(10): k(f"buffer_store_dwordx4 {v(M,4)}, {v(t[0])}, {s(SO,4)}, 0 offen offset:{128*i} sc1")
    k(f"""s_mov_b32 s24, {WS_ST}
    s_mov_b32 exec_lo, 0x01010101
    s_mov_b32 exec_hi, 0x01010101
    buffer_store_dwordx2 {v(M,2)}, {v(t[1])}, {s(SW,4)}, s24 offen sc1
    s_lshl_b32 s24, s2, 5
    s_add_u32 s24, s24, {WS_KEY}
    s_mov_b64 exec, 0xff
    buffer_store_dword {v(t[4])}, {v(t[3])}, {s(SW,4)}, s24 offen sc1
    s_cmp_ge_u32 s2, 96
    s_cbranch_scc1 L_not1
    s_lshl_b32 s24, s23, 6
    s_add_u32 s24, s24, {WS_ACT}
    s_mov_b64 exec, 0xffff
    buffer_store_dword {v(M)}, {v(t[3])}, {s(SW,4)}, s24 offen sc1
    s_mov_b64 exec, -1""")
    dma_perm(k,L,t,3072)
    k("s_waitcnt lgkmcnt(0)"); srd(k,SG,56,1966080); srd(k,SU,58,1966080)
    k(f"""s_lshl_b32 s24, s23, 5
    s_mov_b32 s25, {WB}
    s_waitcnt vmcnt(0)
    L_loop1:
    s_mov_b32 m0, s25
    s_add_u32 s26, s25, 20480
    buffer_load_dwordx4 {v(t[1])}, {s(SG,4)}, s24 offen lds
    s_mov_b32 m0, s26
    s_add_u32 s25, s25, 1024
    buffer_load_dwordx4 {v(t[1])}, {s(SU,4)}, s24 offen lds
    s_add_u32 s24, s24, 98304
    s_cmp_lt_u32 s25, {WB+20480}
    s_cbranch_scc1 L_loop1
    s_branch L_join
    L_not1:
    s_mov_b64 exec, -1
    s_cmp_ge_u32 s2, 136
    s_cbranch_scc1 L_exit""")
    dma_perm(k,L,t,1280)
    k("s_waitcnt lgkmcnt(0)"); srd(k,SD,60,1966080)
    k(f"""s_lshl_b32 s24, s23, 5
    s_mov_b32 s25, {WB}
    s_waitcnt vmcnt(0)
    L_loop2:
    s_mov_b32 m0, s25
    s_add_u32 s25, s25, 1024
    buffer_load_dwordx4 {v(t[1])}, {s(SD,4)}, s24 offen lds
    s_add_u32 s24, s24, 40960
    s_cmp_lt_u32 s25, {WB+49152}
    s_cbranch_scc1 L_loop2
    L_join:""")
    for i in range(NB): k("s_barrier")
    k("s_waitcnt vmcnt(0)\ns_barrier\ns_endpgm\nL_exit:\ns_waitcnt vmcnt(0)\ns_endpgm")
def top2(k,R):
    KY=R(8,2); a=R(); L=R(); q=R(); n=R(); t=[R() for _ in range(8)]
    k(f"""v_lshlrev_b32 {v(a)}, 5, v0
    s_mov_b32 s24, {WS_KEY}
    v_and_b32 {v(L)}, 63, v0
    v_lshrrev_b32 {v(q)}, 4, {v(L)}
    v_and_b32 {v(n)}, 15, {v(L)}
    v_and_b32 {v(t[1])}, 1, {v(L)}
    v_cmp_eq_u32 s[34:35], 1, {v(t[1])}
    s_lshl_b32 s25, s22, 3
    s_add_u32 s25, s25, {T2}
    v_mov_b32 {v(t[6])}, s25
    s_mov_b32 s36, 0x00030003
    s_mov_b32 s37, 0x00030003""")
    spin_init(k)
    k(f"""C_poll:
    buffer_load_dwordx4 {v(KY,4)}, {v(a)}, {s(SW,4)}, s24 offen sc1
    buffer_load_dwordx4 {v(KY+4,4)}, {v(a)}, {s(SW,4)}, s24 offen offset:16 sc1
    s_waitcnt vmcnt(0)
    v_min3_u32 {v(t[0])}, {v(KY)}, {v(KY+1)}, {v(KY+2)}
    v_min3_u32 {v(t[1])}, {v(KY+3)}, {v(KY+4)}, {v(KY+5)}
    v_min3_u32 {v(t[0])}, {v(t[0])}, {v(KY+6)}, {v(KY+7)}
    v_min_u32 {v(t[0])}, {v(t[0])}, {v(t[1])}
    v_cmp_eq_u32 vcc, 0, {v(t[0])}""")
    spin_back(k,"C_poll"); stamp(k,10)
    for j in range(4): k(f"v_max_u32 {v(t[0])}, {v(KY+2*j)}, {v(KY+2*j+1)}\nv_min_u32 {v(KY+2*j+1)}, {v(KY+2*j)}, {v(KY+2*j+1)}\nv_mov_b32 {v(KY+2*j)}, {v(t[0])}")
    merge2(k,KY,KY+1,KY+2,KY+3,t[0]); merge2(k,KY+4,KY+5,KY+6,KY+7,t[1]); merge2(k,KY,KY+1,KY+4,KY+5,t[0])
    for r in (8,4,2,1):
        k(f"v_mov_b32_dpp {v(KY+2)}, {v(KY)} row_ror:{r} row_mask:0xf bank_mask:0xf\nv_mov_b32_dpp {v(KY+3)}, {v(KY+1)} row_ror:{r} row_mask:0xf bank_mask:0xf")
        merge2(k,KY,KY+1,KY+2,KY+3,t[0])
    for p in (16,32):
        k(f"v_mov_b32 {v(KY+2)}, {v(KY)}\nv_mov_b32 {v(KY+3)}, {v(KY+1)}\nv_permlane{p}_swap_b32 {v(KY)}, {v(KY+2)}\nv_permlane{p}_swap_b32 {v(KY+1)}, {v(KY+3)}")
        merge2(k,KY,KY+1,KY+2,KY+3,t[0])
    k(f"""ds_write_b64 {v(t[6])}, {v(KY,2)}
    v_mov_b32 {v(t[6])}, {T2}
    s_waitcnt lgkmcnt(0)
    s_barrier
    ds_read_b128 {v(KY,4)}, {v(t[6])}
    ds_read_b128 {v(KY+4,4)}, {v(t[6])} offset:16
    s_waitcnt lgkmcnt(0)""")
    merge2(k,KY,KY+1,KY+2,KY+3,t[0]); merge2(k,KY+4,KY+5,KY+6,KY+7,t[1]); merge2(k,KY,KY+1,KY+4,KY+5,t[0])
    key=KY+2; row=KY+3
    k(f"""v_cndmask_b32_e64 {v(key)}, {v(KY)}, {v(KY+1)}, s[34:35]
    v_and_b32 {v(row)}, 0x7ff, {v(key)}
    v_sub_u32 {v(row)}, 0x7ff, {v(row)}""")
    return dict(KY=KY,L=L,q=q,n=n,t=t,key=key,row=row)
def tr_addr(k,d,T,mul):
    q,n,t=T['q'],T['n'],T['t']
    k(f"""v_lshrrev_b32 {v(t[0])}, 1, {v(q)}
    v_and_b32 {v(t[1])}, 1, {v(q)}
    v_lshlrev_b32 {v(t[0])}, 9, {v(t[0])}
    v_lshl_add_u32 {v(t[0])}, {v(t[1])}, 7, {v(t[0])}
    v_lshl_add_u32 {v(t[0])}, {v(n)}, 3, {v(t[0])}
    s_mul_i32 s24, s22, {mul}
    s_add_u32 s24, s24, {WB}
    v_add_u32 {v(d)}, s24, {v(t[0])}""")
def maxtree(k,regs_,d):
    regs_=list(regs_); k(f"v_max3_u32 {v(d)}, {v(regs_[0])}, {v(regs_[1])}, {v(regs_[2])}"); regs_=regs_[3:]
    while len(regs_)>=2: k(f"v_max3_u32 {v(d)}, {v(d)}, {v(regs_[0])}, {v(regs_[1])}"); regs_=regs_[2:]
    if regs_: k(f"v_max_u32 {v(d)}, {v(d)}, {v(regs_[0])}")
def phaseC1(k,R,T):
    q,n,t,L,row,KY=[T[x] for x in 'q n t L row KY'.split()]; sp=KY+4
    BO=R(20,2); WT=R(40,2); DG=R(4,2); DU=R(4,2); vr=R(); vred=R(); vred2=R(); va=R()
    k(f"""s_mul_i32 s24, s22, 320
    v_lshl_add_u32 {v(t[7])}, {v(q)}, 4, s24
    v_mul_u32_u24 {v(t[2])}, 1280, {v(row)}
    v_add_u32 {v(t[2])}, {v(t[2])}, {v(t[7])}
    v_lshlrev_b32 {v(t[3])}, 3, {v(row)}
    s_mov_b32 s26, {WS_ST}""")
    for j in range(20): k(f"v_mov_b32 {v(BO+j)}, 0x3f803f80")
    spin_init(k)
    def loads():
        for ks in range(5): k(f"buffer_load_dwordx4 {v(BO+4*ks,4)}, {v(t[2])}, {s(SO,4)}, 0 offen offset:{64*ks} sc1")
        k(f"buffer_load_dwordx2 {v(sp,2)}, {v(t[3])}, {s(SW,4)}, s26 offen sc1")
    k("s_mov_b64 exec, s[36:37]"); loads(); k("s_mov_b64 exec, -1")
    tr_addr(k,vr,T,5120)
    for ks in range(5):
        for m in range(2):
            for rd in range(2): k(f"ds_read_b64_tr_b16 {v(WT+8*ks+4*m+2*rd,2)}, {v(vr)} offset:{20480*m+1024*ks+256*rd}")
    k(f"""v_lshlrev_b32 {v(vred2)}, 4, {v(L)}
    s_lshl_b32 s25, s22, 11
    v_add_u32 {v(vred)}, s25, {v(vred2)}
    v_lshlrev_b32 {v(va)}, 5, {v(n)}
    v_lshl_add_u32 {v(va)}, {v(q)}, 3, {v(va)}
    s_mov_b64 exec, s[36:37]
    s_branch C1_chk
    C1_poll:"""); loads()
    k("C1_chk:\ns_waitcnt vmcnt(0)"); maxtree(k,[BO+2*j for j in range(10)]+[sp],t[0])
    k(f"v_cmp_eq_u32 vcc, -1, {v(t[0])}"); spin_back(k,"C1_poll"); k("s_mov_b64 exec, -1\ns_waitcnt lgkmcnt(0)"); stamp(k,11)
    for ks in range(5): mf(k,DG,WT+8*ks,BO+4*ks,DG if ks else None); mf(k,DU,WT+8*ks+4,BO+4*ks,DU if ks else None)
    k(f"v_xor_b32 {v(sp+1)}, 0x80000000, {v(sp+1)}")
    for a in (DG,DU):
        for j in range(4): k(f"v_fmac_f32_dpp {v(a+j)}, {v(a+j)}, {v(sp+1)} row_newbcast:2 row_mask:0xf bank_mask:0xf")
    k(f"ds_write_b128 {v(vred)}, {v(DG,4)} \nds_write_b128 {v(vred)}, {v(DU,4)} offset:1024\ns_waitcnt lgkmcnt(0)\ns_barrier\ns_cmp_lg_u32 s22, 0\ns_cbranch_scc1 F_fin")
    PR=WT
    for w in range(4):
        for m in range(2): k(f"ds_read_b128 {v(PR+16*m+4*w,4)}, {v(vred2)} offset:{2048*w+1024*m}")
    k(f"s_lshl_b32 s24, s23, 6\ns_add_u32 s24, s24, {WS_ACT}\ns_waitcnt lgkmcnt(0)")
    for m in range(2):
        for h in range(2):
            a=PR+16*m+2*h
            k(f"v_pk_add_f32 {v(a,2)}, {v(a,2)}, {v(a+4,2)}\nv_pk_add_f32 {v(a+8,2)}, {v(a+8,2)}, {v(a+12,2)}\nv_pk_add_f32 {v(a,2)}, {v(a,2)}, {v(a+8,2)}\nv_pk_mul_f32 {v(a,2)}, {v(a,2)}, {v(sp,2)} op_sel_hi:[1,0]")
    g=PR; u=PR+16; e=PR+4
    for j in range(4): k(f"v_mul_f32 {v(e+j)}, {fl(-1.4426950408889634)}, {v(g+j)}")
    for j in range(4): k(f"v_exp_f32 {v(e+j)}, {v(e+j)}")
    for j in range(4): k(f"v_mul_f32 {v(g+j)}, {v(g+j)}, {v(u+j)}")
    for j in range(4): k(f"v_add_f32 {v(e+j)}, 1.0, {v(e+j)}")
    for j in range(4): k(f"v_rcp_f32 {v(e+j)}, {v(e+j)}")
    for j in range(4): k(f"v_mul_f32 {v(g+j)}, {v(g+j)}, {v(e+j)}")
    AC=KY+6; cvt(k,AC,g,g+1); cvt(k,AC+1,g+2,g+3)
    k(f"s_mov_b64 exec, s[36:37]\nbuffer_store_dwordx2 {v(AC,2)}, {v(va)}, {s(SW,4)}, s24 offen sc1")
def phaseC2(k,R,T):
    q,n,t,L,row,KY,key=[T[x] for x in 'q n t L row KY key'.split()]; O=KY+4; sig=KY+6
    AB=R(48,2); WT=R(48,2); D=R(8,2); vr=R(); vred=R(); vred2=R(); va=R(); vo=R()
    k(f"""v_mul_u32_u24 {v(vo)}, 1280, {v(row)}
    v_lshl_add_u32 {v(vo)}, {v(q)}, 3, {v(vo)}
    s_lshl_b32 s27, s23, 5
    v_lshrrev_b32 {v(t[0])}, 1, {v(q)}
    v_and_b32 {v(t[1])}, 1, {v(q)}
    v_lshlrev_b32 {v(va)}, 6, {v(t[0])}
    v_lshl_add_u32 {v(va)}, {v(t[1])}, 4, {v(va)}
    v_lshl_add_u32 {v(va)}, {v(n)}, 5, {v(va)}
    s_mul_i32 s26, s22, 1536
    s_add_u32 s26, s26, {WS_ACT}""")
    tr_addr(k,vr,T,12288)
    for s_ in range(12):
        for rd in range(2): k(f"ds_read_b64_tr_b16 {v(WT+4*s_+2*rd,2)}, {v(vr)} offset:{1024*s_+256*rd}")
    k(f"""v_ashrrev_i32 {v(sig)}, 31, {v(key)}
    v_not_b32 {v(sig)}, {v(sig)}
    v_or_b32 {v(sig)}, 0x80000000, {v(sig)}
    v_xor_b32 {v(sig)}, {v(sig)}, {v(key)}
    v_mul_f32 {v(sig)}, {fl(-1.4426950408889634)}, {v(sig)}
    v_exp_f32 {v(sig)}, {v(sig)}
    v_lshlrev_b32 {v(vred2)}, 4, {v(L)}
    s_lshl_b32 s25, s22, 10
    v_add_f32 {v(sig)}, 1.0, {v(sig)}
    v_add_u32 {v(vred)}, s25, {v(vred2)}
    v_rcp_f32 {v(sig)}, {v(sig)}""")
    spin_init(k); k(f"s_mov_b64 exec, s[36:37]\nC2_poll:\nbuffer_load_dwordx2 {v(O,2)}, {v(vo)}, {s(SO,4)}, s27 offen sc1")
    for s_ in range(12): k(f"buffer_load_dwordx4 {v(AB+4*s_,4)}, {v(va)}, {s(SW,4)}, s26 offen offset:{128*s_} sc1")
    k("s_waitcnt vmcnt(0)"); maxtree(k,[AB+2*j for j in range(24)]+[O],t[0])
    k(f"v_cmp_eq_u32 vcc, -1, {v(t[0])}"); spin_back(k,"C2_poll"); k("s_mov_b64 exec, -1\ns_waitcnt lgkmcnt(0)"); stamp(k,11)
    for s_ in range(12): mf(k,D+4*(s_&1),WT+4*s_,AB+4*s_,D+4*(s_&1) if s_>1 else None)
    k(f"v_pk_add_f32 {v(D,2)}, {v(D,2)}, {v(D+4,2)}\nv_pk_add_f32 {v(D+2,2)}, {v(D+2,2)}, {v(D+6,2)}")
    k(f"ds_write_b128 {v(vred)}, {v(D,4)}\ns_waitcnt lgkmcnt(0)\ns_barrier\ns_cmp_lg_u32 s22, 0\ns_cbranch_scc1 F_fin")
    for w in range(4): k(f"ds_read_b128 {v(WT+4*w,4)}, {v(vred2)} offset:{1024*w}")
    k(f"""v_lshlrev_b32 {v(D)}, 16, {v(O)}
    v_and_b32 {v(D+1)}, 0xffff0000, {v(O)}
    v_lshlrev_b32 {v(D+2)}, 16, {v(O+1)}
    v_and_b32 {v(D+3)}, 0xffff0000, {v(O+1)}
    s_waitcnt lgkmcnt(0)""")
    for h in (0,2): k(f"v_pk_add_f32 {v(WT+h,2)}, {v(WT+h,2)}, {v(WT+4+h,2)}\nv_pk_add_f32 {v(WT+8+h,2)}, {v(WT+8+h,2)}, {v(WT+12+h,2)}\nv_pk_add_f32 {v(WT+h,2)}, {v(WT+h,2)}, {v(WT+8+h,2)}")
    for j in range(4): k(f"v_fmac_f32 {v(D+j)}, {v(sig)}, {v(WT+j)}")
    cvt(k,O,D,D+1); cvt(k,O+1,D+2,D+3)
    k(f"s_mov_b64 exec, s[36:37]\nbuffer_store_dwordx2 {v(O,2)}, {v(vo)}, {s(SO,4)}, s27 offen")
```

```python
from asmlib import *
XB=2621440; GP=82432; ZB=32*GP
WS_KEY=0x290000; WS_ST=WS_KEY+8192; WS_SEL=WS_ST+16384; WS_ACT=WS_SEL+256; WS_P=WS_ACT+8192; WS_END=WS_P+96*5120
import os
DIAG=int(os.environ.get('DIAG','0')); WS_DG=WS_END; WS_SZ=WS_END+(1<<19 if DIAG else 0)
def stamp(k,i):
    if DIAG: k(f"s_memrealtime s[{64+2*i}:{65+2*i}]")
def stamp_out(k,kern,n,wave='s22'):
    if not DIAG: return
    k("s_waitcnt vmcnt(0)"); stamp(k,n); k("s_waitcnt lgkmcnt(0)\ns_mov_b64 exec, -1")
    for i in range(n+1): k(f"v_writelane_b32 v2, s{64+2*i}, {i}")
    k(f"v_and_b32 v1, 63, v0\nv_lshlrev_b32 v1, 2, v1\ns_lshl_b32 s64, s2, 2\ns_add_u32 s64, s64, {wave}\ns_lshl_b32 s64, s64, 6\ns_add_u32 s64, s64, {WS_DG+65536*kern}\ns_mov_b64 exec, {(1<<(n+1))-1}\nbuffer_store_dword v2, v1, s[12:15], s64 offen")
SX,SW,SO=8,12,16
def cvt(k,d,a,b): k(f"v_cvt_pk_bf16_f32 {v(d)}, {a if isinstance(a,str) else v(a)}, {b if isinstance(b,str) else v(b)}")
def mf(k,d,a,b,c,n=4,op="16x16x32"): k(f"v_mfma_f32_{op}_bf16 {v(d,4)}, {v(a,n)}, {v(b,n)}, {v(c,4) if c is not None else 0}")
def rb(k,d,t):
    k(f"v_cvt_pk_bf16_f32 {v(t)}, {v(d)}, {v(d)}\nv_lshlrev_b32 {v(d)}, 16, {v(t)}")

def phaseA(k,R,ST=""):
    RS=10240; MN=RS+256
    X=R(80,2); va=R(); vb=R(); L=R(); q=R(); n=R(); t=[R() for _ in range(8)]
    k(f"""v_and_b32 {v(L)}, 63, v0
    v_lshrrev_b32 {v(t[0])}, 3, {v(L)}
    s_lshl_b32 s24, s22, 4
    v_add_u32 {v(t[0])}, s24, {v(t[0])}
    s_mov_b32 s25, 40960
    s_mul_i32 s26, s20, 1280
    v_and_b32 {v(t[1])}, 7, {v(L)}
    v_lshlrev_b32 {v(t[2])}, 4, {v(t[1])}
    v_mad_u32_u24 {v(va)}, {v(t[0])}, s25, {v(t[2])}
    s_add_u32 s27, s26, 327680""")
    for st in range(2):
        for i in range(10): k(f"buffer_load_dwordx4 {v(X+40*st+4*i,4)}, {v(va)}, {s(SX,4)}, s{26+st} offen offset:{128*i}")
    k(f"""v_mul_u32_u24 {v(vb)}, 160, {v(t[0])}
    v_lshrrev_b32 {v(t[2])}, 2, {v(t[1])}
    v_lshl_add_u32 {v(vb)}, {v(t[2])}, 3, {v(vb)}
    v_and_b32 {v(t[2])}, 3, {v(L)}
    s_lshr_b32 s30, s21, 1
    v_cmp_eq_u32 s[28:29], s30, {v(t[2])}""")
    vst=R(); vst2=R()
    k(f"""v_and_b32 {v(t[2])}, 1, {v(L)}
    v_cmp_eq_u32 s[32:33], 1, {v(t[2])}
    v_lshl_add_u32 {v(t[2])}, {v(t[2])}, 3, {v(t[0])}
    v_lshlrev_b32 {v(vst)}, 2, {v(t[2])}
    v_lshlrev_b32 {v(vst2)}, 1, {v(t[2])}
    v_lshrrev_b32 {v(q)}, 4, {v(L)}
    v_and_b32 {v(n)}, 15, {v(L)}""")
    G=R(16,2); sg=R()
    k(f"""v_and_b32 {v(t[0])}, 7, {v(L)}
    s_lshl_b32 s24, s22, 3
    v_add_u32 {v(t[0])}, s24, {v(t[0])}
    v_lshrrev_b32 {v(t[1])}, 3, {v(n)}
    v_lshlrev_b32 {v(t[2])}, 9, {v(t[1])}
    v_mad_u32_u24 {v(t[2])}, {v(t[0])}, s20, {v(t[2])}
    v_mov_b32 {v(sg)}, 0x80008000
    v_mul_lo_u32 {v(sg)}, {v(sg)}, {v(t[1])}
    v_lshl_add_u32 {v(t[3])}, {v(t[0])}, 1, {v(t[1])}
    v_cmp_eq_u32 vcc, 1, {v(t[3])}
    v_cndmask_b32_e64 {v(t[4])}, {v(t[0])}, 32, vcc
    v_cndmask_b32_e64 {v(t[2])}, {v(t[2])}, 0, vcc
    v_lshlrev_b32 {v(t[5])}, 7, {v(q)}
    v_mad_u32_u24 {v(t[2])}, {v(t[4])}, {v(t[5])}, {v(t[2])}
    v_cvt_f32_u32 {v(t[4])}, {v(t[4])}
    v_cvt_f32_u32 {v(t[2])}, {v(t[2])}
    v_mul_f32 {v(t[4])}, {fl(1/64)}, {v(t[4])}
    v_mul_f32 {v(t[2])}, {fl(1/2048)}, {v(t[2])}""")
    vz=R()
    k(f"""s_mov_b32 s24, {GP}
    v_mul_lo_u32 {v(vz)}, {v(t[0])}, s24
    v_lshl_add_u32 {v(t[5])}, {v(t[1])}, 5, s20
    v_mul_u32_u24 {v(t[5])}, 1288, {v(t[5])}
    v_mul_u32_u24 {v(t[6])}, 40, {v(q)}
    s_mul_i32 s24, s21, 160
    v_add3_u32 {v(vz)}, {v(vz)}, {v(t[5])}, {v(t[6])}
    v_add_u32 {v(vz)}, s24, {v(vz)}""")
    for j in range(16):
        kk=32*(j>>3)+16*((j>>2)&1)+(j&3)
        k(f"v_fmamk_f32 {v(G+j)}, {v(t[4])}, {fl(kk)}, {v(t[2])}")
    for j in range(16): k(f"v_fract_f32 {v(G+j)}, {v(G+j)}")
    for j in range(16): k(f"v_cos_f32 {v(G+j)}, {v(G+j)}")
    MC=R(16,2); MS=R(16,2); NC=R(16,2); NS=R(16,2); Zs=R(16,2); Zp=R(16,2); tc=R(5); ts=R(5)
    for a in (MC,MS,NC,NS,Zs,Zp):
        for i in range(4): k(f"v_mov_b32 {v(a+4*i+3)}, 0")
    k(f"""s_lshl_b32 s24, s21, 2
    v_lshl_add_u32 {v(t[0])}, {v(q)}, 5, s24
    v_cvt_f32_u32 {v(t[1])}, {v(n)}
    v_cvt_f32_u32 {v(t[2])}, {v(t[0])}
    v_mul_f32 {v(t[1])}, {fl(1/640)}, {v(t[1])}
    v_mul_f32 {v(t[2])}, {v(t[1])}, {v(t[2])}""")
    def trig(e,p0,i,dc,dsn):
        for jj in range(5): k(f"v_fmamk_f32 {v(tc+jj)}, {v(e)}, {fl(128*jj+i)}, {v(p0)}")
        for jj in range(5): k(f"v_fract_f32 {v(tc+jj)}, {v(tc+jj)}")
        for jj in range(5): k(f"v_sin_f32 {v(ts+jj)}, {v(tc+jj)}")
        for jj in range(5): k(f"v_cos_f32 {v(tc+jj)}, {v(tc+jj)}")
        for d,x in ((dsn,ts),(dc,tc)):
            cvt(k,d,x,x+1); cvt(k,d+1,x+2,x+3); cvt(k,d+2,x+4,"0")
    for i in range(4): trig(t[1],t[2],i,MC+4*i,MS+4*i)
    k(f"""v_lshrrev_b32 {v(t[1])}, 2, {v(n)}
    v_add_u32 {v(t[1])}, 16, {v(t[1])}
    v_and_b32 {v(t[3])}, 3, {v(n)}
    v_add_u32 {v(t[0])}, {v(t[0])}, {v(t[3])}
    v_cvt_f32_u32 {v(t[1])}, {v(t[1])}
    v_cvt_f32_u32 {v(t[2])}, {v(t[0])}
    v_mul_f32 {v(t[1])}, {fl(1/640)}, {v(t[1])}
    v_mul_f32 {v(t[2])}, {v(t[1])}, {v(t[2])}
    v_cmp_eq_u32 s[34:35], 0, {v(t[3])}
    v_cmp_eq_u32 s[36:37], 1, {v(t[3])}
    v_cmp_eq_u32 s[38:39], 2, {v(t[3])}
    v_cmp_eq_u32 s[40:41], 3, {v(t[3])}""")
    trig(t[1],t[2],0,NC+12,NS+12)
    for i in range(4):
        for a in (NC,NS):
            for j in range(3): k(f"v_cndmask_b32_e64 {v(a+4*i+j)}, 0, {v(a+12+j)}, s[{34+2*i}:{35+2*i}]")
    vr=R(); vq=R()
    k(f"""v_lshrrev_b32 {v(t[0])}, 2, {v(L)}
    v_mul_u32_u24 {v(vr)}, 160, {v(t[0])}
    v_and_b32 {v(t[0])}, 3, {v(L)}
    v_lshl_add_u32 {v(vr)}, {v(t[0])}, 3, {v(vr)}
    v_lshlrev_b32 {v(vq)}, 3, {v(q)}""")
    ac=R(8,2)
    for j in range(8): k(f"v_mov_b32 {v(ac+j)}, 0")
    k("s_mov_b32 s24, 0x3f803f80"); stamp(k,1)
    for st in range(2):
        for i in range(10):
            k(f"s_waitcnt vmcnt({19-10*st-i})")
            for j in range(4):
                x=X+40*st+4*i+j
                k(f"v_dot2c_f32_bf16 {v(ac+4*st+(j&1))}, s24, {v(x)}\nv_dot2c_f32_bf16 {v(ac+4*st+2+(j&1))}, {v(x)}, {v(x)}")
        k(f"s_mov_b64 exec, s[28:29]\ns_bitcmp1_b32 s21, 0\ns_cbranch_scc1 A_odd{st}")
        for i in range(10): k(f"ds_write_b64 {v(vb)}, {v(X+40*st+4*i,2)} offset:{1280*st+16*i}")
        k(f"s_branch A_done{st}\nA_odd{st}:")
        for i in range(10): k(f"ds_write_b64 {v(vb)}, {v(X+40*st+4*i+2,2)} offset:{1280*st+16*i}")
        k(f"A_done{st}:\ns_mov_b64 exec, -1")
    k("s_nop 1"); stamp(k,2)
    for j in range(4): k(f"v_add_f32 {v(ac+2*j)}, {v(ac+2*j)}, {v(ac+2*j+1)}")
    for pat in ("quad_perm:[1,0,3,2]","quad_perm:[2,3,0,1]","row_half_mirror"):
        for j in range(4): k(f"v_add_f32_dpp {v(ac+2*j)}, {v(ac+2*j)}, {v(ac+2*j)} {pat} row_mask:0xf bank_mask:0xf")
    k(f"""v_cndmask_b32_e64 {v(t[0])}, {v(ac)}, {v(ac+4)}, s[32:33]
    v_cndmask_b32_e64 {v(t[1])}, {v(ac+2)}, {v(ac+6)}, s[32:33]
    v_mul_f32 {v(t[0])}, {fl(-1/640)}, {v(t[0])}
    v_mul_f32 {v(t[1])}, {fl(1/640)}, {v(t[1])}
    v_fma_f32 {v(t[1])}, -{v(t[0])}, {v(t[0])}, {v(t[1])}
    v_max_f32 {v(t[1])}, 0, {v(t[1])}""")
    cvt(k,t[3],t[0],t[0]); rb(k,t[1],t[2])
    k(f"ds_write_b16 {v(vst2)}, {v(t[3])} offset:{MN}\nv_add_f32 {v(t[1])}, {fl(1e-5)}, {v(t[1])}"); rb(k,t[1],t[2])
    k(f"v_sqrt_f32 {v(t[1])}, {v(t[1])}"); rb(k,t[1],t[2])
    k(f"v_rcp_f32 {v(t[1])}, {v(t[1])}\nds_write_b32 {v(vst)}, {v(t[1])} offset:{RS}\ns_waitcnt lgkmcnt(0)\ns_barrier")
    stamp(k,3)
    rs=X; mn=X+16; XT=X+24; D0=X+64; D=R(20,2)
    k(f"v_lshlrev_b32 {v(t[0])}, 1, {v(vq)}")
    for j in range(4): k(f"ds_read_b128 {v(rs+4*j,4)}, {v(t[0])} offset:{RS+64*j}")
    for j in range(4): k(f"ds_read_b64 {v(mn+2*j,2)}, {v(vq)} offset:{MN+32*j}")
    for ks in range(2):
        for T in range(5):
            for rd in range(2): k(f"ds_read_b64_tr_b16 {v(XT+20*ks+4*T+2*rd,2)}, {v(vr)} offset:{(32*ks+16*rd)*160+32*T}")
    k("s_waitcnt lgkmcnt(15)")
    for j in range(16): k(f"v_mul_f32 {v(G+j)}, {v(G+j)}, {v(rs+j)}")
    for j in range(8): cvt(k,G+j,G+2*j,G+2*j+1)
    mf(k,D0,mn,G,None); mf(k,D0,mn+4,G+4,D0)
    k("s_waitcnt lgkmcnt(10)")
    for T in range(5): mf(k,D+4*T,XT+4*T,G,D0)
    k("s_waitcnt lgkmcnt(0)")
    for T in range(5): mf(k,D+4*T,XT+20+4*T,G+4,D+4*T)
    E=X; EM=X+16; O=X+20
    for i in range(4):
        cvt(k,Zs+4*i,D+i,D+4+i); cvt(k,Zs+4*i+1,D+8+i,D+12+i); cvt(k,Zs+4*i+2,D+16+i,"0")
    for i in range(4):
        for j in range(3): k(f"v_xor_b32_dpp {v(Zp+4*i+j)}, {v(Zs+4*i+j)}, {v(sg)} row_ror:8 row_mask:0xf bank_mask:0xf")
    for i in range(4): mf(k,E+4*i,MC+4*i,Zs+4*i,None)
    for i in range(4): mf(k,E+4*i,MS+4*i,Zp+4*i,E+4*i)
    for i in range(4): mf(k,EM,NC+4*i,Zs+4*i,EM if i else None); mf(k,EM,NS+4*i,Zp+4*i,EM)
    for r in range(4): cvt(k,O+2*r,E+r,E+4+r); cvt(k,O+2*r+1,E+8+r,E+12+r)
    k(f"buffer_store_dwordx4 {v(O,4)}, {v(vz)}, {s(SW,4)}, 0 offen{ST}\nbuffer_store_dwordx4 {v(O+4,4)}, {v(vz)}, {s(SW,4)}, 0 offen offset:16{ST}")
    cvt(k,O+8,EM,EM+1); cvt(k,O+9,EM+2,EM+3)
    k(f"buffer_store_dwordx2 {v(O+8,2)}, {v(vz)}, {s(SW,4)}, 0 offen offset:32{ST}"); stamp(k,4)

YB=GP
def phaseB_pre(k,R,SR):
    B={}
    L=R(); q=R(); n=R(); t=[R() for _ in range(8)]
    vT,vE,vA,row,sa,sb=[R() for _ in range(6)]
    k(f"""v_and_b32 {v(L)}, 63, v0
    v_lshrrev_b32 {v(q)}, 4, {v(L)}
    v_and_b32 {v(n)}, 15, {v(L)}
    v_and_b32 {v(t[0])}, 7, {v(L)}
    v_lshrrev_b32 {v(t[1])}, 5, {v(L)}
    s_lshl_b32 s24, s21, 2
    s_cmp_eq_u32 s20, 0
    s_cbranch_scc1 B_special
    v_add_u32 {v(vT)}, s24, {v(t[0])}
    v_lshlrev_b32 {v(vT)}, 6, {v(vT)}
    v_mov_b32 {v(vE)}, 0
    v_cmp_gt_u32 vcc, 4, {v(t[0])}
    v_cndmask_b32_e64 {v(vA)}, 0, 1.0, vcc
    s_add_u32 s25, s24, s22
    s_lshl_b32 s25, s25, 6
    s_add_u32 s25, s25, s20
    s_sub_u32 s26, 2048, s25
    v_cmp_eq_u32 vcc, 0, {v(t[1])}
    v_mov_b32 {v(t[2])}, s26
    v_mov_b32 {v(t[3])}, s25
    v_mov_b32 {v(t[4])}, s22
    v_cndmask_b32 {v(row)}, {v(t[2])}, {v(t[3])}, vcc
    v_cndmask_b32_e64 {v(sa)}, 4, {v(t[4])}, vcc
    v_cndmask_b32_e64 {v(sb)}, {v(t[4])}, 4, vcc
    s_branch B_common
    B_special:""")
    def tau(d,j,a,b):
        k(f"""v_lshrrev_b32 {v(a)}, 1, {v(j)}
        v_add_u32 {v(a)}, s24, {v(a)}
        v_sub_u32 {v(b)}, 64, {v(a)}
        v_and_b32 {v(d)}, 1, {v(j)}
        v_cmp_eq_u32 vcc, 1, {v(d)}
        v_cndmask_b32 {v(d)}, {v(a)}, {v(b)}, vcc
        v_cmp_eq_u32 vcc, 64, {v(d)}
        v_cndmask_b32_e64 {v(d)}, {v(d)}, 32, vcc""")
    tau(vT,t[0],t[2],t[3])
    k(f"""v_and_b32 {v(vE)}, 1, {v(vT)}
    v_lshlrev_b32 {v(vE)}, 9, {v(vE)}
    v_lshlrev_b32 {v(vT)}, 5, {v(vT)}
    v_mov_b32 {v(vA)}, 0.5
    s_lshl_b32 s25, s22, 1
    v_add_u32 {v(sa)}, s25, {v(t[1])}""")
    tau(row,sa,t[2],t[3])
    k(f"""v_and_b32 {v(t[2])}, 31, {v(row)}
    v_xor_b32 {v(t[3])}, 1, {v(sa)}
    v_cmp_eq_u32 vcc, 0, {v(t[2])}
    v_cndmask_b32 {v(sb)}, {v(t[3])}, {v(sa)}, vcc
    v_lshlrev_b32 {v(row)}, 5, {v(row)}
    B_common:""")
    XR=R(10,2); WR=R(10,2); vx=R(); u=R()
    k(f"""v_and_b32 {v(u)}, 31, {v(L)}
    v_mul_u32_u24 {v(t[2])}, 40, {v(u)}
    v_mul_u32_u24 {v(vx)}, 1280, {v(row)}
    v_add_u32 {v(vx)}, {v(vx)}, {v(t[2])}""")
    for a,ad,sr in ((XR,vx,SX),(WR,t[2],SR)):
        k(f"buffer_load_dwordx4 {v(a,4)}, {v(ad)}, {s(sr,4)}, 0 offen\nbuffer_load_dwordx4 {v(a+4,4)}, {v(ad)}, {s(sr,4)}, 0 offen offset:16\nbuffer_load_dwordx2 {v(a+8,2)}, {v(ad)}, {s(sr,4)}, 0 offen offset:32")
    B.update(L=L,q=q,n=n,t=t,vT=vT,vE=vE,vA=vA,row=row,sa=sa,sb=sb,XR=XR,WR=WR,vx=vx,u=u)
    return B
def phaseB_dma(k,R,B,LD=""):
    vd=R(); L=B['L']
    k(f"s_mul_i32 s24, s22, 20480\nv_lshl_add_u32 {v(vd)}, {v(L)}, 4, s24\ns_mul_i32 s25, s20, {GP}")
    for kk in range(5):
        k(f"s_add_u32 m0, s24, {4096*kk}\ns_add_u32 s26, s25, {4096*kk}")
        for j in range(4): k(f"buffer_load_dwordx4 {v(vd)}, {s(SW,4)}, s26 offen offset:{1024*j}{LD} lds")
    k(f"s_mov_b32 m0, 81920\nv_lshlrev_b32 {v(vd)}, 4, {v(L)}\ns_add_u32 s26, s25, 81920\nbuffer_load_dwordx4 {v(vd)}, {s(SW,4)}, s26 offen{LD} lds")
def phaseB_const(k,R,B):
    L,q,n,t,vT,vE,vA,sa,sb,u,XR,WR=[B[x] for x in 'L q n t vT vE vA sa sb u XR WR'.split()]
    MB=R(8,2); C2=R(4,2); S2=R(4,2); tc=R(8,2); ts=R(8,2); vr=R(); vy=R(); vy2=R(); sg=R()
    k(f"""v_and_b32 {v(t[0])}, 1, {v(q)}
    v_lshrrev_b32 {v(t[1])}, 1, {v(q)}
    v_lshlrev_b32 {v(t[0])}, 4, {v(t[0])}
    v_lshl_add_u32 {v(t[0])}, {v(t[1])}, 3, {v(t[0])}
    v_lshrrev_b32 {v(t[1])}, 3, {v(n)}
    v_lshl_add_u32 {v(t[2])}, {v(t[1])}, 9, {v(vE)}
    v_mad_u32_u24 {v(t[2])}, {v(vT)}, {v(t[0])}, {v(t[2])}
    v_cvt_f32_u32 {v(t[3])}, {v(vT)}
    v_cvt_f32_u32 {v(t[2])}, {v(t[2])}
    v_mul_f32 {v(t[3])}, {fl(1/2048)}, {v(t[3])}
    v_mul_f32 {v(t[2])}, {fl(1/2048)}, {v(t[2])}
    v_bfe_u32 {v(t[4])}, {v(L)}, 2, 2
    v_add_u32 {v(t[4])}, {v(t[4])}, {v(t[0])}
    v_mul_u32_u24 {v(vr)}, 1288, {v(t[4])}
    v_and_b32 {v(t[4])}, 3, {v(L)}
    v_mul_u32_u24 {v(t[4])}, 160, {v(t[4])}
    s_mul_i32 s24, s22, 40
    v_add3_u32 {v(vr)}, {v(vr)}, {v(t[4])}, s24
    v_and_b32 {v(t[4])}, 7, {v(L)}
    v_mul_u32_u24 {v(t[4])}, 2576, {v(t[4])}
    v_lshl_add_u32 {v(t[4])}, {v(t[1])}, 6, {v(t[4])}
    v_lshl_add_u32 {v(t[4])}, {v(q)}, 4, {v(t[4])}
    s_lshl_b32 s24, s22, 9
    s_add_u32 s24, s24, {YB}
    v_add_u32 {v(vy)}, s24, {v(t[4])}
    s_lshl_b32 s24, s22, 7
    s_add_u32 s24, s24, {YB+2048}
    v_add_u32 {v(vy2)}, s24, {v(t[4])}
    v_bfrev_b32 {v(sg)}, 1""")
    def trig(e,p0,ks,amp,dc,dsn):
        for j in range(8): k(f"v_fmamk_f32 {v(tc+j)}, {v(e)}, {fl(ks[j])}, {v(p0)}")
        for j in range(8): k(f"v_fract_f32 {v(tc+j)}, {v(tc+j)}")
        for j in range(8): k(f"v_sin_f32 {v(ts+j)}, {v(tc+j)}")
        for j in range(8): k(f"v_cos_f32 {v(tc+j)}, {v(tc+j)}")
        if amp is not None:
            for j in range(8): k(f"v_mul_f32 {v(ts+j)}, {v(amp)}, {v(ts+j)}")
            for j in range(8): k(f"v_mul_f32 {v(tc+j)}, {v(amp)}, {v(tc+j)}")
        for j in range(4): cvt(k,dsn+j,ts+2*j,ts+2*j+1)
        for j in range(4): cvt(k,dc+j,tc+2*j,tc+2*j+1)
    trig(t[3],t[2],list(range(8)),vA,MB,MB+4)
    k(f"""v_cvt_f32_u32 {v(t[3])}, {v(n)}
    v_cvt_f32_u32 {v(t[2])}, {v(q)}
    v_mul_f32 {v(t[3])}, {fl(1/32)}, {v(t[3])}
    v_mul_f32 {v(t[2])}, 4.0, {v(t[2])}
    v_mul_f32 {v(t[2])}, {v(t[3])}, {v(t[2])}""")
    trig(t[3],t[2],[0,1,2,3,16,17,18,19],None,C2,S2)
    n0,n1,m0_,m1,m2=[R() for _ in range(5)]
    k(f"""v_mul_u32_u24 {v(t[0])}, 2576, {v(sa)}
    v_lshl_add_u32 {v(n0)}, {v(u)}, 2, {v(t[0])}
    v_add_u32 {v(n0)}, {YB}, {v(n0)}
    v_add_u32 {v(n1)}, 128, {v(n0)}
    v_mul_u32_u24 {v(t[0])}, 2576, {v(sb)}
    v_add_u32 {v(t[0])}, {YB}, {v(t[0])}
    v_sub_u32 {v(t[1])}, 31, {v(u)}
    v_lshl_add_u32 {v(m0_)}, {v(t[1])}, 2, {v(t[0])}
    v_add_u32 {v(m1)}, 128, {v(m0_)}
    v_add_u32 {v(t[1])}, 1, {v(t[1])}
    v_and_b32 {v(t[1])}, 31, {v(t[1])}
    v_lshl_add_u32 {v(m2)}, {v(t[1])}, 2, {v(t[0])}""")
    B.update(MB=MB,C2=C2,S2=S2,vr=vr,vy=vy,vy2=vy2,sg=sg,n0=n0,n1=n1,m0=m0_,m1=m1,m2=m2)
def red32(k,regs_,tmp,op="v_add_f32"):
    for r in (8,4,2,1):
        for a in regs_: k(f"{op}_dpp {v(a)}, {v(a)}, {v(a)} row_ror:{r} row_mask:0xf bank_mask:0xf")
    for a,b in zip(regs_,tmp): k(f"v_mov_b32 {v(b)}, {v(a)}")
    for a,b in zip(regs_,tmp): k(f"v_permlane16_swap_b32 {v(a)}, {v(b)}")
    for a,b in zip(regs_,tmp): k(f"{op} {v(a)}, {v(a)}, {v(b)}")
def phaseB_unpack(k,R,B):
    XR,WR,t=B['XR'],B['WR'],B['t']
    XF=R(20,2); WF=R(20,2); sw=R(2,2)
    k("s_mov_b32 s24, 0xffff0000")
    for a,f in ((XR,XF),(WR,WF)):
        for b4 in range(5):
            k(f"v_lshlrev_b32 {v(f+4*b4)}, 16, {v(a+2*b4)}\nv_lshlrev_b32 {v(f+4*b4+1)}, 16, {v(a+2*b4+1)}\nv_and_b32 {v(f+4*b4+2)}, s24, {v(a+2*b4)}\nv_and_b32 {v(f+4*b4+3)}, s24, {v(a+2*b4+1)}")
    k(f"v_pk_add_f32 {v(sw,2)}, {v(WF,2)}, {v(WF+2,2)}")
    for j in range(2,10): k(f"v_pk_add_f32 {v(sw,2)}, {v(sw,2)}, {v(WF+2*j,2)}")
    k(f"v_add_f32 {v(sw)}, {v(sw)}, {v(sw+1)}"); red32(k,[sw],[t[0]])
    B.update(XF=XF,WF=WF,sw=sw)
def phaseB_main(k,R,B,ST="",slot=False,s0=4):
    MB,C2,S2,vr,vy,vy2,sg,t,XF,WF,sw,vx,row,u=[B[x] for x in 'MB C2 S2 vr vy vy2 sg t XF WF sw vx row u'.split()]
    ZT=R(80,2); D=R(40,2); P2=ZT+40
    def rd_(r_):
        for ks in range(2):
            for xy in range(2):
                for rd in range(2): k(f"ds_read_b64_tr_b16 {v(ZT+16*r_+8*ks+4*xy+2*rd,2)}, {v(vr)} offset:{(32*ks+4*rd)*1288+640*xy+8*r_}")
    rd_(0); rd_(1)
    for r_ in range(5):
        k(f"s_waitcnt lgkmcnt({8 if r_<4 else 0})")
        for ks in range(2):
            for xy in range(2): mf(k,D+8*r_+4*xy,ZT+16*r_+8*ks+4*xy,MB+4*ks,D+8*r_+4*xy if ks else None)
        if r_+2<5: rd_(r_+2)
    U=ZT; F=ZT+20
    for r_ in range(5):
        for j in range(4): cvt(k,U+4*r_+j,D+8*r_+2*j,D+8*r_+2*j+1)
        for j in range(4): k(f"v_xor_b32 {v(P2+4*r_+j)}, {v(sg)}, {v(U+4*r_+j)}")
        for j in range(4): k(f"v_mov_b32_dpp {v(P2+4*r_+j)}, {v(U+4*r_+j)} row_ror:8 row_mask:0xf bank_mask:0x3")
        for j in range(4): k(f"v_xor_b32_dpp {v(U+4*r_+j)}, {v(U+4*r_+j)}, {v(sg)} row_ror:8 row_mask:0xf bank_mask:0xc")
        if r_: mf(k,F+4*r_-4,C2,U+4*r_-4,None); mf(k,F+4*r_-4,S2,P2+4*r_-4,F+4*r_-4)
    mf(k,F+16,C2,U+16,None); mf(k,F+16,S2,P2+16,F+16)
    for r_ in range(4): k(f"ds_write_b128 {v(vy)}, {v(F+4*r_,4)} offset:{128*r_}")
    k(f"ds_write_b128 {v(vy2)}, {v(F+16,4)}\ns_waitcnt lgkmcnt(0)\ns_barrier")
    stamp(k,s0)
    YN=D; YM=D+20
    for b4 in range(5):
        e=4*b4
        k(f"ds_read2st64_b32 {v(YN+e,2)}, {v(B['n0'])} offset0:{e//2} offset1:{e//2+1}\nds_read2st64_b32 {v(YN+e+2,2)}, {v(B['n1'])} offset0:{e//2} offset1:{e//2+1}")
        if b4==0: k(f"ds_read_b32 {v(YM)}, {v(B['m2'])}\nds_read_b32 {v(YM+1)}, {v(B['m0'])} offset:{128*18}")
        else: k(f"ds_read2st64_b32 {v(YM+e,2)}, {v(B['m0'])} offset0:{(20-e)//2} offset1:{(18-e)//2}")
        k(f"ds_read2st64_b32 {v(YM+e+2,2)}, {v(B['m1'])} offset0:{(18-e)//2} offset1:{(16-e)//2}")
    a1=ZT; a2=ZT+2; a3=ZT+4; H=XF
    for b4 in range(5):
        k(f"s_waitcnt lgkmcnt({min(15,16-4*b4)})")
        for e in (4*b4,4*b4+2): k(f"v_pk_add_f32 {v(YN+e,2)}, {v(YN+e,2)}, {v(YM+e,2)}")
        for e in (4*b4,4*b4+2): k(f"v_pk_add_f32 {v(H+e,2)}, {v(H+e,2)}, {v(YN+e,2)}")
        for e in (4*b4,4*b4+2):
            if e==0: k(f"v_pk_mul_f32 {v(a2,2)}, {v(H,2)}, {v(H,2)}\nv_pk_mul_f32 {v(a3,2)}, {v(H,2)}, {v(WF,2)}")
            else: k(f"v_pk_fma_f32 {v(a2,2)}, {v(H+e,2)}, {v(H+e,2)}, {v(a2,2)}\nv_pk_fma_f32 {v(a3,2)}, {v(H+e,2)}, {v(WF+e,2)}, {v(a3,2)}")
            if e==2: k(f"v_pk_add_f32 {v(a1,2)}, {v(H,2)}, {v(H+2,2)}")
            elif e>2: k(f"v_pk_add_f32 {v(a1,2)}, {v(a1,2)}, {v(H+e,2)}")
    for a in (a1,a2,a3): k(f"v_add_f32 {v(a)}, {v(a)}, {v(a+1)}")
    red32(k,[a1,a2,a3],t[0:3])
    k1=ZT+6; k0=ZT+8; sp=ZT+10; O=ZT+12
    k(f"""v_mul_f32 {v(sp+1)}, {fl(1/640)}, {v(a1)}
    v_mul_f32 {v(a2)}, {fl(1/640)}, {v(a2)}
    v_fma_f32 {v(a2)}, -{v(sp+1)}, {v(sp+1)}, {v(a2)}
    v_max_f32 {v(a2)}, 0, {v(a2)}""")
    rb(k,a2,t[0]); k(f"v_add_f32 {v(a2)}, {fl(1e-5)}, {v(a2)}"); rb(k,a2,t[0]); k(f"v_sqrt_f32 {v(a2)}, {v(a2)}"); rb(k,a2,t[0])
    k(f"""v_rcp_f32 {v(a2)}, {v(a2)}
    v_fma_f32 {v(a3)}, -{v(sp+1)}, {v(sw)}, {v(a3)}
    v_add_f32 {v(k1)}, 1.0, {v(a2)}
    v_mul_f32 {v(k0)}, {v(sp+1)}, {v(a2)}
    v_rcp_f32 {v(sp)}, {v(k1)}
    v_mul_f32 {v(a3)}, {v(a3)}, {v(a2)}""")
    for j in range(10): k(f"v_pk_fma_f32 {v(H+2*j,2)}, {v(H+2*j,2)}, {v(k1,2)}, {v(k0,2)} op_sel_hi:[1,0,0] neg_lo:[0,0,1] neg_hi:[0,0,1]")
    for b4 in range(5): cvt(k,O+2*b4,H+4*b4,H+4*b4+2); cvt(k,O+2*b4+1,H+4*b4+1,H+4*b4+3)
    k(f"""buffer_store_dwordx4 {v(O,4)}, {v(vx)}, {s(SO,4)}, 0 offen{ST}
    buffer_store_dwordx4 {v(O+4,4)}, {v(vx)}, {s(SO,4)}, 0 offen offset:16{ST}
    buffer_store_dwordx2 {v(O+8,2)}, {v(vx)}, {s(SO,4)}, 0 offen offset:32{ST}
    v_mul_f32 {v(sp)}, {v(sp)}, {v(a2)}
    v_ashrrev_i32 {v(t[0])}, 31, {v(a3)}
    v_or_b32 {v(t[0])}, {v(sg)}, {v(t[0])}
    v_xor_b32 {v(t[0])}, {v(t[0])}, {v(a3)}
    v_and_b32 {v(t[0])}, 0xfffff800, {v(t[0])}
    v_sub_u32 {v(t[1])}, 0x7ff, {v(row)}
    v_or_b32 {v(t[0])}, {v(t[0])}, {v(t[1])}
    v_max_u32 {v(t[0])}, 1, {v(t[0])}
    {f'v_lshrrev_b32 {v(t[2])}, 3, v0' if slot else f'v_lshlrev_b32 {v(t[2])}, 2, {v(row)}'}
    v_lshlrev_b32 {v(t[3])}, 3, {v(row)}
    {f's_lshl_b32 s24, s2, 5' if slot else 's_mov_b32 s24, 0'}
    s_add_u32 s24, s24, {WS_KEY}
    s_mov_b32 s25, {WS_ST}
    s_mov_b32 exec_lo, 1
    s_mov_b32 exec_hi, 1
    buffer_store_dword {v(t[0])}, {v(t[2])}, {s(SW,4)}, s24 offen{ST}
    buffer_store_dwordx2 {v(sp,2)}, {v(t[3])}, {s(SW,4)}, s25 offen{ST}
    s_mov_b64 exec, -1""")
```

```python
import sys
from fused import *
NAME="sequential_preLN__spectral_fnet__moe_arch_mod__prompt_kernel"
k=K()
k("s_cmp_ge_u32 s2, 256\ns_cbranch_scc1 F_end"); stamp(k,0)
if DIAG:
    for i in range(1,16): k(f"s_mov_b32 s{64+2*i}, 0")
k("""s_load_dwordx2 s[4:5], s[0:1], 0
s_load_dwordx4 s[56:59], s[0:1], 80
s_load_dwordx2 s[6:7], s[0:1], 96
s_load_dwordx2 s[40:41], s[0:1], 48
s_and_b32 s20, s2, 31
s_lshr_b32 s21, s2, 5
v_lshrrev_b32 v1, 6, v0
v_readfirstlane_b32 s22, v1
s_and_b32 s23, s2, 7
s_lshr_b32 s24, s2, 3
s_cmp_lt_u32 s2, 96
s_cselect_b32 s25, 12, 5
s_cselect_b32 s26, 0, 12
s_mul_i32 s23, s23, s25
s_add_u32 s23, s23, s24
s_sub_u32 s23, s23, s26
s_waitcnt lgkmcnt(0)""")
srd(k,SX,4,XB); srd(k,SW,6,WS_SZ); srd(k,SO,56,XB)
k("s_cmp_eq_u32 s22, 4\ns_cbranch_scc1 F_loader")
srd(k,44,40,1280); srd(k,SDB,58,256)
R=Alloc(2); phaseA(k,R," sc1"); hi=R.hi
k(f"s_waitcnt vmcnt(0)\ns_barrier"); stamp(k,5)
k(f"""s_cmp_lg_u32 s22, 0
s_cbranch_scc1 F_noflag
v_mov_b32 v1, 1
v_mov_b32 v2, s2
s_mov_b64 exec, 1
buffer_store_byte v1, v2, {s(SDB,4)}, 0 offen sc1
s_mov_b64 exec, -1
F_noflag:""")
R=Alloc(3); B=phaseB_pre(k,R,44); phaseB_const(k,R,B); k("s_waitcnt vmcnt(0)"); phaseB_unpack(k,R,B); stamp(k,6)
k(f"""s_cmp_lg_u32 s22, 0
s_cbranch_scc1 F_nopoll
v_lshlrev_b32 v2, 2, v0
s_mov_b32 s24, 0x01010101""")
spin_init(k)
k(f"F_poll:\nbuffer_load_dword v1, v2, {s(SDB,4)}, 0 offen sc1\ns_waitcnt vmcnt(0)\nv_cmp_ne_u32 vcc, s24, v1"); spin_back(k,"F_poll")
k("F_nopoll:\ns_barrier"); stamp(k,7)
phaseB_dma(k,R,B," sc1"); k("s_waitcnt vmcnt(0)\ns_barrier"); stamp(k,8)
phaseB_main(k,R,B," sc1",True,14); hi=max(hi,R.hi); stamp(k,9)
k("s_cmp_ge_u32 s2, 136\ns_cbranch_scc1 F_fin")
R=Alloc(3); T=top2(k,R); n0=R.n
k("s_cmp_ge_u32 s2, 96\ns_cbranch_scc1 F_c2"); phaseC1(k,R,T); k("s_branch F_fin\nF_c2:"); R.n=n0; phaseC2(k,R,T)
k("F_fin:"); stamp(k,12); stamp_out(k,0,15); k("F_end:\ns_endpgm\nF_loader:"); loader(k,5)
open(sys.argv[1],'w').write(build([(NAME,256,320,F_LDS,hi,k.l)])); print(hi,len(k.l))
```

```python
from phases2 import *
WB=YB+20608; F_LDS=WB+49152; RED=0; T2=8192; SDB=48; SU2=36; SPIN=1<<17
def spin_init(k): k(f"s_mov_b32 s42, {SPIN}")
def spin_back(k,lab): k(f"s_sub_u32 s42, s42, 1\ns_cselect_b64 vcc, 0, vcc\ns_cbranch_vccnz {lab}")
def dma_perm(k,L,t,pitch):
    k(f"""v_lshrrev_b32 {v(t[0])}, 1, {v(L)}
    v_and_b32 {v(t[1])}, 0x13, {v(t[0])}
    v_and_b32 {v(t[2])}, 4, {v(t[0])}
    v_lshl_or_b32 {v(t[1])}, {v(t[2])}, 1, {v(t[1])}
    v_and_b32 {v(t[2])}, 8, {v(t[0])}
    v_lshrrev_b32 {v(t[2])}, 1, {v(t[2])}
    v_or_b32 {v(t[1])}, {v(t[1])}, {v(t[2])}
    v_mul_u32_u24 {v(t[1])}, {pitch}, {v(t[1])}
    v_and_b32 {v(t[2])}, 1, {v(L)}
    v_lshl_add_u32 {v(t[1])}, {v(t[2])}, 4, {v(t[1])}""")
def top8(k,KY,t):
    for j in range(4): k(f"v_max_u32 {v(t[0])}, {v(KY+2*j)}, {v(KY+2*j+1)}\nv_min_u32 {v(KY+2*j+1)}, {v(KY+2*j)}, {v(KY+2*j+1)}\nv_mov_b32 {v(KY+2*j)}, {v(t[0])}")
    top4p(k,KY,t)
def top4p(k,KY,t):
    merge2(k,KY,KY+1,KY+2,KY+3,t[0]); merge2(k,KY+4,KY+5,KY+6,KY+7,t[1]); merge2(k,KY,KY+1,KY+4,KY+5,t[0])
def loader(k):
    R=Alloc(3); L=R(); t=[R() for _ in range(6)]; M=R(4,2); row=R(); KY=R(8,2); l64=R(); non=R(); tg=R(); td=R(); pg=R(); TT=R(7)
    k(f"""s_load_dwordx4 s[56:59], s[0:1], 56
    s_load_dwordx2 s[60:61], s[0:1], 72
    v_and_b32 {v(L)}, 63, v0
    v_lshlrev_b32 {v(l64)}, 6, {v(L)}
    s_mov_b32 s27, {WS_FL}
    s_cmp_lg_u32 s2, 0
    s_cbranch_scc1 L_non0
    buffer_load_dwordx4 {v(KY,4)}, {v(l64)}, {s(SW,4)}, s27 offen sc1
    s_mov_b32 s24, 0x7fffffff
    s_waitcnt vmcnt(0)""")
    for j in range(4): k(f"v_and_b32 {v(KY+j)}, s24, {v(KY+j)}")
    k(f"v_max3_u32 {v(KY)}, {v(KY)}, {v(KY+1)}, {v(KY+2)}\nv_max_u32 {v(KY)}, {v(KY)}, {v(KY+3)}")
    red32(k,[KY],[KY+1],"v_max_u32")
    k(f"""v_mov_b32 {v(KY+1)}, {v(KY)}
    v_permlane32_swap_b32 {v(KY)}, {v(KY+1)}
    v_max_u32 {v(KY)}, {v(KY)}, {v(KY+1)}
    v_add_u32 {v(KY)}, 1, {v(KY)}
    s_mov_b64 exec, 1
    buffer_store_dword {v(KY)}, {v(l64)}, {s(SDB,4)}, 0 offen sc1
    s_mov_b64 exec, -1
    L_non0:
    v_lshrrev_b32 {v(t[0])}, 4, {v(L)}
    s_lshl_b32 s24, s21, 2
    v_add_u32 {v(t[0])}, s24, {v(t[0])}
    s_cmp_eq_u32 s20, 0
    s_cselect_b32 s25, 5, 6
    v_lshlrev_b32 {v(t[0])}, s25, {v(t[0])}
    v_add_u32 {v(t[0])}, s20, {v(t[0])}
    v_sub_u32 {v(t[1])}, 2048, {v(t[0])}
    v_bfe_u32 {v(t[2])}, {v(L)}, 3, 1
    v_cmp_eq_u32 vcc, 1, {v(t[2])}
    v_cndmask_b32 {v(row)}, {v(t[0])}, {v(t[1])}, vcc
    v_mov_b32 {v(t[1])}, 1024
    v_cmp_eq_u32 vcc, 2048, {v(row)}
    v_cndmask_b32 {v(row)}, {v(row)}, {v(t[1])}, vcc
    v_and_b32 {v(t[2])}, 7, {v(L)}
    v_mul_u32_u24 {v(t[0])}, 1280, {v(row)}
    v_lshl_add_u32 {v(t[0])}, {v(t[2])}, 4, {v(t[0])}
    v_lshlrev_b32 {v(t[1])}, 3, {v(row)}
    v_lshlrev_b32 {v(t[3])}, 2, {v(L)}
    v_mov_b32 {v(KY)}, 0
    v_mov_b32 {v(KY+1)}, 0""")
    for j in range(4): k(f"v_mov_b32 {v(M+j)}, -1")
    for i in range(10): k(f"buffer_store_dwordx4 {v(M,4)}, {v(t[0])}, {s(SO,4)}, 0 offen offset:{128*i} sc1")
    k(f"""s_mov_b32 s24, {WS_ST}
    s_mov_b32 exec_lo, 0x01010101
    s_mov_b32 exec_hi, 0x01010101
    buffer_store_dwordx2 {v(M,2)}, {v(t[1])}, {s(SW,4)}, s24 offen sc1
    s_lshr_b32 s28, s2, 2
    s_lshl_b32 s28, s28, 6
    s_and_b32 s25, s2, 3
    s_lshl2_add_u32 s27, s25, s28
    s_lshl3_add_u32 s28, s25, s28
    s_add_u32 s27, s27, {WS_FL}
    s_add_u32 s28, s28, {WS_KEY}
    s_mov_b64 exec, 1
    buffer_store_dwordx2 {v(KY,2)}, {v(l64)}, {s(SW,4)}, s28 offen sc1
    s_cmp_ge_u32 s2, 96
    s_cbranch_scc1 L_noact
    s_lshl_b32 s24, s23, 7
    s_add_u32 s24, s24, {WS_ACT}
    s_mov_b64 exec, 0xffff
    buffer_store_dword {v(M)}, {v(t[3])}, {s(SW,4)}, s24 offen sc1
    L_noact:
    s_mov_b64 exec, -1
    s_barrier
    v_mul_u32_u24 {v(t[0])}, 21846, {v(L)}
    v_lshrrev_b32 {v(t[0])}, 16, {v(t[0])}
    v_mul_u32_u24 {v(t[1])}, {3072-192}, {v(t[0])}
    v_lshl_add_u32 {v(tg)}, {v(L)}, 6, {v(t[1])}
    v_mul_u32_u24 {v(td)}, 1280, {v(L)}
    s_lshr_b32 s24, s2, 3
    s_and_b32 s25, s2, 7
    s_mul_i32 s29, s24, {20*3072}
    s_mul_i32 s30, s25, 384
    s_add_u32 s29, s29, s30
    s_mul_i32 s30, s24, {48*1280}
    s_mul_i32 s25, s25, 160
    s_and_b32 s25, s25, -64
    s_add_u32 s30, s30, s25
    s_cmp_lt_u32 s2, 96
    s_cselect_b32 s31, 12, 5
    s_lshl_b32 s31, s31, 8""")
    dma_perm(k,L,t,"s31"); k(f"v_mov_b32 {v(pg)}, {v(t[1])}\nv_mov_b32 {v(t[5])}, {NL}\ns_waitcnt lgkmcnt(0)")
    srd(k,SG,56,1966080); srd(k,SU2,58,1966080); srd(k,SD,60,1966080)
    spin_init(k)
    k(f"s_mov_b64 exec, 1\nL_np:\nbuffer_load_dword {v(non)}, {v(l64)}, {s(SDB,4)}, 0 offen sc1\ns_waitcnt vmcnt(0)\nv_cmp_eq_u32 vcc, 0, {v(non)}"); spin_back(k,"L_np")
    k(f"""ds_write_b32 {v(t[5])}, {v(non)}
    s_waitcnt lgkmcnt(0)
    s_barrier
    buffer_store_dword {v(non)}, {v(l64)}, {s(SW,4)}, s27 offen sc1
    s_mov_b32 exec_lo, -1
    s_mov_b32 exec_hi, 0x0fffffff""")
    for j,sr in enumerate((SG,SU2)):
        for h in range(2): k(f"buffer_load_dword {v(TT+2*j+h)}, {v(tg)}, {s(sr,4)}, s29 offen offset:{192*h}")
    k("s_mov_b32 exec_hi, 0xffff")
    for h in range(3): k(f"buffer_load_dword {v(TT+4+h)}, {v(td)}, {s(SD,4)}, s30 offen offset:{64*h}")
    k(f"""s_mov_b64 exec, -1
    s_lshl_b32 s24, s23, 5
    s_mov_b32 s25, {WB}
    s_barrier
    s_barrier
    s_cmp_ge_u32 s2, 96
    s_cbranch_scc1 L_not1
    L_loop1:
    s_mov_b32 m0, s25
    s_add_u32 s26, s25, 20480
    buffer_load_dwordx4 {v(pg)}, {s(SG,4)}, s24 offen lds
    s_mov_b32 m0, s26
    s_add_u32 s25, s25, 1024
    buffer_load_dwordx4 {v(pg)}, {s(SU2,4)}, s24 offen lds
    s_add_u32 s24, s24, 98304
    s_cmp_lt_u32 s25, {WB+20480}
    s_cbranch_scc1 L_loop1
    s_branch L_join
    L_not1:
    s_cmp_ge_u32 s2, 136
    s_cbranch_scc1 L_join
    L_loop2:
    s_mov_b32 m0, s25
    s_add_u32 s25, s25, 1024
    buffer_load_dwordx4 {v(pg)}, {s(SD,4)}, s24 offen lds
    s_add_u32 s24, s24, 40960
    s_cmp_lt_u32 s25, {WB+49152}
    s_cbranch_scc1 L_loop2
    L_join:
    v_mov_b32 {v(t[5])}, {KL}
    s_barrier
    s_barrier
    ds_read_b128 {v(KY,4)}, {v(t[5])}
    ds_read_b128 {v(KY+4,4)}, {v(t[5])} offset:16
    s_mov_b32 s24, {WS_KEY}
    s_waitcnt lgkmcnt(0)""")
    top8(k,KY,t)
    k(f"""s_mov_b64 exec, 1
    buffer_store_dwordx2 {v(KY,2)}, {v(l64)}, {s(SW,4)}, s28 offen sc1
    s_mov_b64 exec, -1
    s_cmp_ge_u32 s2, 136
    s_cbranch_scc1 L_exit""")
    spin_init(k)
    k(f"""C_poll:
    buffer_load_dwordx4 {v(KY,4)}, {v(l64)}, {s(SW,4)}, s24 offen sc1
    buffer_load_dwordx4 {v(KY+4,4)}, {v(l64)}, {s(SW,4)}, s24 offen offset:16 sc1
    s_waitcnt vmcnt(0)
    v_min3_u32 {v(t[0])}, {v(KY+1)}, {v(KY+3)}, {v(KY+5)}
    v_min_u32 {v(t[0])}, {v(t[0])}, {v(KY+7)}
    v_cmp_eq_u32 vcc, 0, {v(t[0])}""")
    spin_back(k,"C_poll"); top4p(k,KY,t)
    for r in (8,4,2,1):
        k(f"v_mov_b32_dpp {v(KY+2)}, {v(KY)} row_ror:{r} row_mask:0xf bank_mask:0xf\nv_mov_b32_dpp {v(KY+3)}, {v(KY+1)} row_ror:{r} row_mask:0xf bank_mask:0xf")
        merge2(k,KY,KY+1,KY+2,KY+3,t[0])
    for p in (16,32):
        k(f"v_mov_b32 {v(KY+2)}, {v(KY)}\nv_mov_b32 {v(KY+3)}, {v(KY+1)}\nv_permlane{p}_swap_b32 {v(KY)}, {v(KY+2)}\nv_permlane{p}_swap_b32 {v(KY+1)}, {v(KY+3)}")
        merge2(k,KY,KY+1,KY+2,KY+3,t[0])
    k(f"ds_write_b64 {v(t[5])}, {v(KY,2)} offset:64\ns_waitcnt lgkmcnt(0)\ns_barrier\nL_exit:\ns_waitcnt vmcnt(0)\ns_endpgm")
def top2(k,R):
    KY=R(8,2); L=R(); q=R(); n=R(); t=[R() for _ in range(8)]; key=KY+2; row=KY+3
    k(f"""v_and_b32 {v(L)}, 63, v0
    v_lshrrev_b32 {v(q)}, 4, {v(L)}
    v_and_b32 {v(n)}, 15, {v(L)}
    v_and_b32 {v(t[1])}, 1, {v(L)}
    v_lshlrev_b32 {v(t[6])}, 2, {v(t[1])}
    s_mov_b32 s36, 0x00030003
    s_mov_b32 s37, 0x00030003""")
    return dict(KY=KY,L=L,q=q,n=n,t=t,key=key,row=row)
def top2_get(k,T):
    k(f"s_barrier\nds_read_b32 {v(T['key'])}, {v(T['t'][6])} offset:{KL+64}"); stamp(k,10)
    k(f"s_waitcnt lgkmcnt(0)\nv_and_b32 {v(T['row'])}, 0x7ff, {v(T['key'])}\nv_sub_u32 {v(T['row'])}, 0x7ff, {v(T['row'])}")
def tr_addr(k,d,T,mul):
    q,n,t=T['q'],T['n'],T['t']
    k(f"""v_lshrrev_b32 {v(t[0])}, 1, {v(q)}
    v_and_b32 {v(t[1])}, 1, {v(q)}
    v_lshlrev_b32 {v(t[0])}, 9, {v(t[0])}
    v_lshl_add_u32 {v(t[0])}, {v(t[1])}, 7, {v(t[0])}
    v_lshl_add_u32 {v(t[0])}, {v(n)}, 3, {v(t[0])}
    s_mul_i32 s24, s22, {mul}
    s_add_u32 s24, s24, {WB}
    v_add_u32 {v(d)}, s24, {v(t[0])}""")
def maxtree(k,regs_,d):
    regs_=list(regs_); k(f"v_max3_u32 {v(d)}, {v(regs_[0])}, {v(regs_[1])}, {v(regs_[2])}"); regs_=regs_[3:]
    while len(regs_)>=2: k(f"v_max3_u32 {v(d)}, {v(d)}, {v(regs_[0])}, {v(regs_[1])}"); regs_=regs_[2:]
    if regs_: k(f"v_max_u32 {v(d)}, {v(d)}, {v(regs_[0])}")
def phaseC1(k,R,T):
    q,n,t,L,row,KY=[T[x] for x in 'q n t L row KY'.split()]; sp=KY+4
    BO=R(20,2); WT=R(40,2); DG=R(4,2); DU=R(4,2); vr=R(); vred=R(); vred2=R(); va=R()
    k(f"""s_mul_i32 s24, s22, 320
    v_lshl_add_u32 {v(t[7])}, {v(q)}, 4, s24
    s_mov_b32 s26, {WS_ST}
    s_movk_i32 s27, 1280""")
    for j in range(20): k(f"v_mov_b32 {v(BO+j)}, 0x3f803f80")
    spin_init(k); tr_addr(k,vr,T,5120); top2_get(k,T)
    k(f"v_mad_u32_u24 {v(t[2])}, {v(row)}, s27, {v(t[7])}\nv_lshlrev_b32 {v(t[3])}, 3, {v(row)}")
    def loads():
        for ks in range(5): k(f"buffer_load_dwordx4 {v(BO+4*ks,4)}, {v(t[2])}, {s(SO,4)}, 0 offen offset:{64*ks} sc1")
        k(f"buffer_load_dwordx2 {v(sp,2)}, {v(t[3])}, {s(SW,4)}, s26 offen sc1")
    k("s_mov_b64 exec, s[36:37]"); loads(); k("s_mov_b64 exec, -1")
    for ks in range(5):
        for m in range(2):
            for rd in range(2): k(f"ds_read_b64_tr_b16 {v(WT+8*ks+4*m+2*rd,2)}, {v(vr)} offset:{20480*m+1024*ks+256*rd}")
    k(f"""v_lshlrev_b32 {v(vred2)}, 4, {v(L)}
    s_lshl_b32 s25, s22, 11
    v_add_u32 {v(vred)}, s25, {v(vred2)}
    v_lshlrev_b32 {v(va)}, 4, {v(n)}
    v_lshl_add_u32 {v(va)}, {v(q)}, 4, {v(va)}
    s_mov_b64 exec, s[36:37]
    s_branch C1_chk
    C1_poll:"""); loads()
    k("C1_chk:\ns_waitcnt vmcnt(0)"); maxtree(k,[BO+2*j for j in range(10)]+[sp],t[0])
    k(f"v_cmp_eq_u32 vcc, -1, {v(t[0])}"); spin_back(k,"C1_poll"); k("s_mov_b64 exec, -1\ns_waitcnt lgkmcnt(0)"); stamp(k,11)
    for ks in range(5): mf(k,DG,WT+8*ks,BO+4*ks,DG if ks else None); mf(k,DU,WT+8*ks+4,BO+4*ks,DU if ks else None)
    k(f"v_xor_b32 {v(sp+1)}, 0x80000000, {v(sp+1)}")
    for a in (DG,DU):
        for j in range(4): k(f"v_fmac_f32_dpp {v(a+j)}, {v(a+j)}, {v(sp+1)} row_newbcast:2 row_mask:0xf bank_mask:0xf")
    k(f"ds_write_b128 {v(vred)}, {v(DG,4)} \nds_write_b128 {v(vred)}, {v(DU,4)} offset:1024\ns_waitcnt lgkmcnt(0)\ns_barrier\ns_cmp_lg_u32 s22, 0\ns_cbranch_scc1 F_fin")
    PR=WT
    for w in range(4):
        for m in range(2): k(f"ds_read_b128 {v(PR+16*m+4*w,4)}, {v(vred2)} offset:{2048*w+1024*m}")
    k(f"s_lshl_b32 s24, s23, 7\ns_add_u32 s24, s24, {WS_ACT}\ns_waitcnt lgkmcnt(0)")
    for m in range(2):
        for h in range(2):
            a=PR+16*m+2*h
            k(f"v_pk_add_f32 {v(a,2)}, {v(a,2)}, {v(a+4,2)}\nv_pk_add_f32 {v(a+8,2)}, {v(a+8,2)}, {v(a+12,2)}\nv_pk_add_f32 {v(a,2)}, {v(a,2)}, {v(a+8,2)}\nv_pk_mul_f32 {v(a,2)}, {v(a,2)}, {v(sp,2)} op_sel_hi:[1,0]")
    g=PR; u=PR+16; e=PR+4
    for j in range(4): k(f"v_mul_f32 {v(e+j)}, {fl(-1.4426950408889634)}, {v(g+j)}")
    for j in range(4): k(f"v_exp_f32 {v(e+j)}, {v(e+j)}")
    for j in range(4): k(f"v_mul_f32 {v(g+j)}, {v(g+j)}, {v(u+j)}")
    for j in range(4): k(f"v_add_f32 {v(e+j)}, 1.0, {v(e+j)}")
    for j in range(4): k(f"v_rcp_f32 {v(e+j)}, {v(e+j)}")
    for j in range(4): k(f"v_mul_f32 {v(g+j)}, {v(g+j)}, {v(e+j)}")
    AC=e; cvt(k,AC,g,g+1); cvt(k,AC+1,g+2,g+3); cvt(k,AC+2,g,g+1); cvt(k,AC+3,g+2,g+3)
    k(f"v_permlane16_swap_b32 {v(AC)}, {v(AC+2)}\nv_permlane16_swap_b32 {v(AC+1)}, {v(AC+3)}\ns_mov_b32 exec_lo, 3\ns_mov_b32 exec_hi, 3\nbuffer_store_dwordx4 {v(AC,4)}, {v(va)}, {s(SW,4)}, s24 offen sc1")
def phaseC2(k,R,T):
    q,n,t,L,row,KY,key=[T[x] for x in 'q n t L row KY key'.split()]; O=KY+4; sig=KY+6
    AB=R(48,2); WT=R(48,2); D=R(8,2); vr=R(); vred=R(); vred2=R(); va=R(); vo=R()
    k(f"""s_lshl_b32 s27, s23, 5
    v_lshrrev_b32 {v(t[0])}, 1, {v(q)}
    v_and_b32 {v(t[1])}, 1, {v(q)}
    v_lshlrev_b32 {v(va)}, 7, {v(t[0])}
    v_lshl_add_u32 {v(va)}, {v(t[1])}, 5, {v(va)}
    v_lshl_add_u32 {v(va)}, {v(n)}, 4, {v(va)}
    s_mul_i32 s26, s22, 3072
    s_add_u32 s26, s26, {WS_ACT}""")
    tr_addr(k,vr,T,12288); top2_get(k,T)
    k(f"v_mul_u32_u24 {v(vo)}, 1280, {v(row)}\nv_lshl_add_u32 {v(vo)}, {v(q)}, 3, {v(vo)}")
    for s_ in range(12):
        for rd in range(2): k(f"ds_read_b64_tr_b16 {v(WT+4*s_+2*rd,2)}, {v(vr)} offset:{1024*s_+256*rd}")
    k(f"""v_ashrrev_i32 {v(sig)}, 31, {v(key)}
    v_not_b32 {v(sig)}, {v(sig)}
    v_or_b32 {v(sig)}, 0x80000000, {v(sig)}
    v_xor_b32 {v(sig)}, {v(sig)}, {v(key)}
    v_mul_f32 {v(sig)}, {fl(-1.4426950408889634)}, {v(sig)}
    v_exp_f32 {v(sig)}, {v(sig)}
    v_lshlrev_b32 {v(vred2)}, 4, {v(L)}
    s_lshl_b32 s25, s22, 10
    v_add_f32 {v(sig)}, 1.0, {v(sig)}
    v_add_u32 {v(vred)}, s25, {v(vred2)}
    v_rcp_f32 {v(sig)}, {v(sig)}""")
    spin_init(k); k(f"s_mov_b64 exec, s[36:37]\nC2_poll:\nbuffer_load_dwordx2 {v(O,2)}, {v(vo)}, {s(SO,4)}, s27 offen sc1")
    for s_ in range(12): k(f"buffer_load_dwordx4 {v(AB+4*s_,4)}, {v(va)}, {s(SW,4)}, s26 offen offset:{256*s_} sc1")
    k("s_waitcnt vmcnt(0)"); maxtree(k,[AB+4*j for j in range(12)]+[O],t[0])
    k(f"v_cmp_eq_u32 vcc, -1, {v(t[0])}"); spin_back(k,"C2_poll"); k("s_mov_b64 exec, -1\ns_waitcnt lgkmcnt(0)"); stamp(k,11)
    for s_ in range(12): mf(k,D+4*(s_&1),WT+4*s_,AB+4*s_,D+4*(s_&1) if s_>1 else None)
    k(f"v_pk_add_f32 {v(D,2)}, {v(D,2)}, {v(D+4,2)}\nv_pk_add_f32 {v(D+2,2)}, {v(D+2,2)}, {v(D+6,2)}")
    k(f"ds_write_b128 {v(vred)}, {v(D,4)}\ns_waitcnt lgkmcnt(0)\ns_barrier\ns_cmp_lg_u32 s22, 0\ns_cbranch_scc1 F_fin")
    for w in range(4): k(f"ds_read_b128 {v(WT+4*w,4)}, {v(vred2)} offset:{1024*w}")
    k(f"""v_lshlrev_b32 {v(D)}, 16, {v(O)}
    v_and_b32 {v(D+1)}, 0xffff0000, {v(O)}
    v_lshlrev_b32 {v(D+2)}, 16, {v(O+1)}
    v_and_b32 {v(D+3)}, 0xffff0000, {v(O+1)}
    s_waitcnt lgkmcnt(0)""")
    for h in (0,2): k(f"v_pk_add_f32 {v(WT+h,2)}, {v(WT+h,2)}, {v(WT+4+h,2)}\nv_pk_add_f32 {v(WT+8+h,2)}, {v(WT+8+h,2)}, {v(WT+12+h,2)}\nv_pk_add_f32 {v(WT+h,2)}, {v(WT+h,2)}, {v(WT+8+h,2)}")
    for j in range(4): k(f"v_fmac_f32 {v(D+j)}, {v(sig)}, {v(WT+j)}")
    cvt(k,O,D,D+1); cvt(k,O+1,D+2,D+3)
    k(f"s_mov_b64 exec, s[36:37]\nbuffer_store_dwordx2 {v(O,2)}, {v(vo)}, {s(SO,4)}, s27 offen")
```

```python
from asmlib import *
XB=2621440; GP=82432; ZG=81920; ZB=32*ZG; ZP=2568; TW=16384; KL=8448; NL=12288
WS_KEY=0x290000; WS_ST=WS_KEY+8192; WS_SEL=WS_ST+16384; WS_ACT=WS_SEL+256; WS_FL=WS_ACT+16384; WS_P=WS_FL+8192; WS_END=WS_P+96*5120
import os
DIAG=int(os.environ.get('DIAG','0')); WS_DG=WS_END; WS_SZ=WS_END+(1<<19 if DIAG else 0)
def stamp(k,i):
    if DIAG: k(f"s_memrealtime s[{64+2*i}:{65+2*i}]")
def stamp_out(k,kern,n,wave='s22'):
    if not DIAG: return
    k("s_waitcnt vmcnt(0)"); stamp(k,n); k("s_waitcnt lgkmcnt(0)\ns_mov_b64 exec, -1")
    for i in range(n+1): k(f"v_writelane_b32 v2, s{64+2*i}, {i}")
    k(f"v_and_b32 v1, 63, v0\nv_lshlrev_b32 v1, 2, v1\ns_lshl_b32 s64, s2, 2\ns_add_u32 s64, s64, {wave}\ns_lshl_b32 s64, s64, 6\ns_add_u32 s64, s64, {WS_DG+65536*kern}\ns_mov_b64 exec, {(1<<(n+1))-1}\nbuffer_store_dword v2, v1, s[12:15], s64 offen")
SX,SW,SO=8,12,16
def cvt(k,d,a,b): k(f"v_cvt_pk_bf16_f32 {v(d)}, {a if isinstance(a,str) else v(a)}, {b if isinstance(b,str) else v(b)}")
def mf(k,d,a,b,c,n=4,op="16x16x32"): k(f"v_mfma_f32_{op}_bf16 {v(d,4)}, {v(a,n)}, {v(b,n)}, {v(c,4) if c is not None else 0}")
def rb(k,d,t):
    k(f"v_cvt_pk_bf16_f32 {v(t)}, {v(d)}, {v(d)}\nv_lshlrev_b32 {v(d)}, 16, {v(t)}")

def phaseA(k,R,ST=""):
    RS=10240; MN=RS+256
    X=R(80,2); va=R(); vb=R(); L=R(); q=R(); n=R(); t=[R() for _ in range(8)]
    k(f"""v_and_b32 {v(L)}, 63, v0
    v_lshrrev_b32 {v(t[0])}, 3, {v(L)}
    s_lshl_b32 s24, s22, 4
    v_add_u32 {v(t[0])}, s24, {v(t[0])}
    s_mov_b32 s25, 40960
    s_mul_i32 s26, s20, 1280
    v_and_b32 {v(t[1])}, 7, {v(L)}
    v_lshlrev_b32 {v(t[2])}, 4, {v(t[1])}
    v_mad_u32_u24 {v(va)}, {v(t[0])}, s25, {v(t[2])}
    s_add_u32 s27, s26, 327680""")
    for st in range(2):
        for i in range(10): k(f"buffer_load_dwordx4 {v(X+40*st+4*i,4)}, {v(va)}, {s(SX,4)}, s{26+st} offen offset:{128*i}")
    k(f"""v_mul_u32_u24 {v(vb)}, 160, {v(t[0])}
    v_lshrrev_b32 {v(t[2])}, 2, {v(t[1])}
    v_lshl_add_u32 {v(vb)}, {v(t[2])}, 3, {v(vb)}
    v_and_b32 {v(t[2])}, 3, {v(L)}
    s_lshr_b32 s30, s21, 1
    v_cmp_eq_u32 s[28:29], s30, {v(t[2])}""")
    vst=R(); vst2=R()
    k(f"""v_and_b32 {v(t[2])}, 1, {v(L)}
    v_cmp_eq_u32 s[32:33], 1, {v(t[2])}
    v_lshl_add_u32 {v(t[2])}, {v(t[2])}, 3, {v(t[0])}
    v_lshlrev_b32 {v(vst)}, 2, {v(t[2])}
    v_lshlrev_b32 {v(vst2)}, 1, {v(t[2])}
    v_lshrrev_b32 {v(q)}, 4, {v(L)}
    v_and_b32 {v(n)}, 15, {v(L)}""")
    G=R(16,2); sg=R()
    k(f"""v_and_b32 {v(t[0])}, 7, {v(L)}
    s_lshl_b32 s24, s22, 3
    v_add_u32 {v(t[0])}, s24, {v(t[0])}
    v_lshrrev_b32 {v(t[1])}, 3, {v(n)}
    v_lshlrev_b32 {v(t[2])}, 9, {v(t[1])}
    v_mad_u32_u24 {v(t[2])}, {v(t[0])}, s20, {v(t[2])}
    v_mov_b32 {v(sg)}, 0x80008000
    v_mul_lo_u32 {v(sg)}, {v(sg)}, {v(t[1])}
    v_lshl_add_u32 {v(t[3])}, {v(t[0])}, 1, {v(t[1])}
    v_cmp_eq_u32 vcc, 1, {v(t[3])}
    v_cndmask_b32_e64 {v(t[4])}, {v(t[0])}, 32, vcc
    v_cndmask_b32_e64 {v(t[2])}, {v(t[2])}, 0, vcc
    v_lshlrev_b32 {v(t[5])}, 7, {v(q)}
    v_mad_u32_u24 {v(t[2])}, {v(t[4])}, {v(t[5])}, {v(t[2])}
    v_cvt_f32_u32 {v(t[4])}, {v(t[4])}
    v_cvt_f32_u32 {v(t[2])}, {v(t[2])}
    v_mul_f32 {v(t[4])}, {fl(1/64)}, {v(t[4])}
    v_mul_f32 {v(t[2])}, {fl(1/2048)}, {v(t[2])}""")
    vz=R()
    k(f"""v_and_b32 {v(t[5])}, 7, {v(L)}
    v_mul_u32_u24 {v(vz)}, 320, {v(t[5])}
    v_mul_u32_u24 {v(t[5])}, 160, {v(t[1])}
    v_mul_u32_u24 {v(t[6])}, 40, {v(q)}
    s_mul_i32 s62, s22, 2560
    s_add_u32 s62, s62, {TW}
    v_add3_u32 {v(vz)}, {v(vz)}, {v(t[5])}, {v(t[6])}
    v_add_u32 {v(vz)}, s62, {v(vz)}
    s_mul_i32 s63, s22, {8*ZG}
    s_mul_i32 s24, s20, 2560
    s_add_u32 s63, s63, s24
    s_mul_i32 s24, s21, 320
    s_add_u32 s63, s63, s24""")
    for j in range(16):
        kk=32*(j>>3)+16*((j>>2)&1)+(j&3)
        k(f"v_fmamk_f32 {v(G+j)}, {v(t[4])}, {fl(kk)}, {v(t[2])}")
    for j in range(16): k(f"v_fract_f32 {v(G+j)}, {v(G+j)}")
    for j in range(16): k(f"v_cos_f32 {v(G+j)}, {v(G+j)}")
    MC=R(16,2); MS=R(16,2); NC=R(16,2); NS=R(16,2); Zs=R(16,2); Zp=R(16,2); tc=R(5); ts=R(5)
    for a in (MC,MS,NC,NS,Zs,Zp):
        for i in range(4): k(f"v_mov_b32 {v(a+4*i+3)}, 0")
    k(f"""s_lshl_b32 s24, s21, 2
    v_lshl_add_u32 {v(t[0])}, {v(q)}, 5, s24
    v_cvt_f32_u32 {v(t[1])}, {v(n)}
    v_cvt_f32_u32 {v(t[2])}, {v(t[0])}
    v_mul_f32 {v(t[1])}, {fl(1/640)}, {v(t[1])}
    v_mul_f32 {v(t[2])}, {v(t[1])}, {v(t[2])}""")
    def trig(e,p0,i,dc,dsn):
        for jj in range(5): k(f"v_fmamk_f32 {v(tc+jj)}, {v(e)}, {fl(128*jj+i)}, {v(p0)}")
        for jj in range(5): k(f"v_fract_f32 {v(tc+jj)}, {v(tc+jj)}")
        for jj in range(5): k(f"v_sin_f32 {v(ts+jj)}, {v(tc+jj)}")
        for jj in range(5): k(f"v_cos_f32 {v(tc+jj)}, {v(tc+jj)}")
        for d,x in ((dsn,ts),(dc,tc)):
            cvt(k,d,x,x+1); cvt(k,d+1,x+2,x+3); cvt(k,d+2,x+4,"0")
    for i in range(4): trig(t[1],t[2],i,MC+4*i,MS+4*i)
    k(f"""v_lshrrev_b32 {v(t[1])}, 2, {v(n)}
    v_add_u32 {v(t[1])}, 16, {v(t[1])}
    v_and_b32 {v(t[3])}, 3, {v(n)}
    v_add_u32 {v(t[0])}, {v(t[0])}, {v(t[3])}
    v_cvt_f32_u32 {v(t[1])}, {v(t[1])}
    v_cvt_f32_u32 {v(t[2])}, {v(t[0])}
    v_mul_f32 {v(t[1])}, {fl(1/640)}, {v(t[1])}
    v_mul_f32 {v(t[2])}, {v(t[1])}, {v(t[2])}
    v_cmp_eq_u32 s[34:35], 0, {v(t[3])}
    v_cmp_eq_u32 s[36:37], 1, {v(t[3])}
    v_cmp_eq_u32 s[38:39], 2, {v(t[3])}
    v_cmp_eq_u32 s[40:41], 3, {v(t[3])}""")
    trig(t[1],t[2],0,NC+12,NS+12)
    for i in range(4):
        for a in (NC,NS):
            for j in range(3): k(f"v_cndmask_b32_e64 {v(a+4*i+j)}, 0, {v(a+12+j)}, s[{34+2*i}:{35+2*i}]")
    vr=R(); vq=R()
    k(f"""v_lshrrev_b32 {v(t[0])}, 2, {v(L)}
    v_mul_u32_u24 {v(vr)}, 160, {v(t[0])}
    v_and_b32 {v(t[0])}, 3, {v(L)}
    v_lshl_add_u32 {v(vr)}, {v(t[0])}, 3, {v(vr)}
    v_lshlrev_b32 {v(vq)}, 3, {v(q)}""")
    ac=R(8,2)
    for j in range(8): k(f"v_mov_b32 {v(ac+j)}, 0")
    k("s_mov_b32 s24, 0x3f803f80"); stamp(k,1)
    for st in range(2):
        for i in range(10):
            k(f"s_waitcnt vmcnt({19-10*st-i})")
            for j in range(4):
                x=X+40*st+4*i+j
                k(f"v_dot2c_f32_bf16 {v(ac+4*st+(j&1))}, s24, {v(x)}\nv_dot2c_f32_bf16 {v(ac+4*st+2+(j&1))}, {v(x)}, {v(x)}")
        k(f"s_mov_b64 exec, s[28:29]\ns_bitcmp1_b32 s21, 0\ns_cbranch_scc1 A_odd{st}")
        for i in range(10): k(f"ds_write_b64 {v(vb)}, {v(X+40*st+4*i,2)} offset:{1280*st+16*i}")
        k(f"s_branch A_done{st}\nA_odd{st}:")
        for i in range(10): k(f"ds_write_b64 {v(vb)}, {v(X+40*st+4*i+2,2)} offset:{1280*st+16*i}")
        k(f"A_done{st}:\ns_mov_b64 exec, -1")
    k("s_nop 1"); stamp(k,2)
    for j in range(4): k(f"v_add_f32 {v(ac+2*j)}, {v(ac+2*j)}, {v(ac+2*j+1)}")
    for pat in ("quad_perm:[1,0,3,2]","quad_perm:[2,3,0,1]","row_half_mirror"):
        for j in range(4): k(f"v_add_f32_dpp {v(ac+2*j)}, {v(ac+2*j)}, {v(ac+2*j)} {pat} row_mask:0xf bank_mask:0xf")
    k(f"""v_cndmask_b32_e64 {v(t[0])}, {v(ac)}, {v(ac+4)}, s[32:33]
    v_cndmask_b32_e64 {v(t[1])}, {v(ac+2)}, {v(ac+6)}, s[32:33]
    v_mul_f32 {v(t[0])}, {fl(-1/640)}, {v(t[0])}
    v_mul_f32 {v(t[1])}, {fl(1/640)}, {v(t[1])}
    v_fma_f32 {v(t[1])}, -{v(t[0])}, {v(t[0])}, {v(t[1])}
    v_max_f32 {v(t[1])}, 0, {v(t[1])}""")
    cvt(k,t[3],t[0],t[0]); rb(k,t[1],t[2])
    k(f"ds_write_b16 {v(vst2)}, {v(t[3])} offset:{MN}\nv_add_f32 {v(t[1])}, {fl(1e-5)}, {v(t[1])}"); rb(k,t[1],t[2])
    k(f"v_sqrt_f32 {v(t[1])}, {v(t[1])}"); rb(k,t[1],t[2])
    k(f"v_rcp_f32 {v(t[1])}, {v(t[1])}\nds_write_b32 {v(vst)}, {v(t[1])} offset:{RS}\ns_waitcnt lgkmcnt(0)\ns_barrier")
    stamp(k,3)
    rs=X; mn=X+16; XT=X+24; D0=X+64; D=R(20,2)
    k(f"v_lshlrev_b32 {v(t[0])}, 1, {v(vq)}")
    for j in range(4): k(f"ds_read_b128 {v(rs+4*j,4)}, {v(t[0])} offset:{RS+64*j}")
    for j in range(4): k(f"ds_read_b64 {v(mn+2*j,2)}, {v(vq)} offset:{MN+32*j}")
    for ks in range(2):
        for T in range(5):
            for rd in range(2): k(f"ds_read_b64_tr_b16 {v(XT+20*ks+4*T+2*rd,2)}, {v(vr)} offset:{(32*ks+16*rd)*160+32*T}")
    k("s_waitcnt lgkmcnt(15)")
    for j in range(16): k(f"v_mul_f32 {v(G+j)}, {v(G+j)}, {v(rs+j)}")
    for j in range(8): cvt(k,G+j,G+2*j,G+2*j+1)
    mf(k,D0,mn,G,None); mf(k,D0,mn+4,G+4,D0)
    ga=X+68; gl=X+71
    k(f"s_mov_b32 s24, {ZG-320}\nv_lshlrev_b32 {v(gl)}, 4, {v(L)}")
    for m in range(3): k(f"v_add_u32 {v(t[0])}, {64*m}, {v(L)}\nv_mul_u32_u24 {v(t[1])}, 3277, {v(t[0])}\nv_lshrrev_b32 {v(t[1])}, 16, {v(t[1])}\nv_lshlrev_b32 {v(t[0])}, 4, {v(t[0])}\nv_mad_u32_u24 {v(ga+m)}, {v(t[1])}, s24, {v(t[0])}")
    k(f"v_add_u32 {v(gl)}, s62, {v(gl)}")
    k("s_waitcnt lgkmcnt(10)")
    for T in range(5): mf(k,D+4*T,XT+4*T,G,D0)
    k("s_waitcnt lgkmcnt(0)")
    for T in range(5): mf(k,D+4*T,XT+20+4*T,G+4,D+4*T)
    E=X; EM=X+16; O=X+20
    for i in range(4):
        cvt(k,Zs+4*i,D+i,D+4+i); cvt(k,Zs+4*i+1,D+8+i,D+12+i); cvt(k,Zs+4*i+2,D+16+i,"0")
    for i in range(4):
        for j in range(3): k(f"v_xor_b32_dpp {v(Zp+4*i+j)}, {v(Zs+4*i+j)}, {v(sg)} row_ror:8 row_mask:0xf bank_mask:0xf")
    for i in range(4): mf(k,E+4*i,MC+4*i,Zs+4*i,None)
    for i in range(4): mf(k,E+4*i,MS+4*i,Zp+4*i,E+4*i)
    for i in range(4): mf(k,EM,NC+4*i,Zs+4*i,EM if i else None); mf(k,EM,NS+4*i,Zp+4*i,EM)
    for r in range(4): cvt(k,O+2*r,E+r,E+4+r); cvt(k,O+2*r+1,E+8+r,E+12+r); k(f"ds_write_b64 {v(vz)}, {v(O+2*r,2)} offset:{8*r}")
    cvt(k,O+8,EM,EM+1); cvt(k,O+9,EM+2,EM+3); k(f"ds_write_b64 {v(vz)}, {v(O+8,2)} offset:32\ns_waitcnt lgkmcnt(0)")
    lin_out(k,X+32,gl,[ga,ga+1,ga+2],SW,["s63"]*3,ST); stamp(k,4)
def lin_out(k,O,gl,ga,sr,so,ST):
    for m in range(3): k(f"ds_read_b128 {v(O+4*m,4)}, {v(gl)} offset:{1024*m}")
    for m in range(3):
        k(f"s_waitcnt lgkmcnt({2-m})")
        if m==2: k("s_mov_b32 exec_hi, 0")
        k(f"buffer_store_dwordx4 {v(O+4*m,4)}, {v(ga[m])}, {s(sr,4)}, {so[m]} offen{ST}")
    k("s_mov_b32 exec_hi, -1")

YB=GP
def phaseB_pre(k,R,SR):
    B={}
    L=R(); q=R(); n=R(); t=[R() for _ in range(8)]
    vT,vE,vA,row,sa,sb=[R() for _ in range(6)]
    k(f"""v_and_b32 {v(L)}, 63, v0
    v_lshrrev_b32 {v(q)}, 4, {v(L)}
    v_and_b32 {v(n)}, 15, {v(L)}
    v_and_b32 {v(t[0])}, 7, {v(L)}
    v_lshrrev_b32 {v(t[1])}, 5, {v(L)}
    s_lshl_b32 s24, s21, 2
    s_cmp_eq_u32 s20, 0
    s_cbranch_scc1 B_special
    v_add_u32 {v(vT)}, s24, {v(t[0])}
    v_lshlrev_b32 {v(vT)}, 6, {v(vT)}
    v_mov_b32 {v(vE)}, 0
    v_cmp_gt_u32 vcc, 4, {v(t[0])}
    v_cndmask_b32_e64 {v(vA)}, 0, 1.0, vcc
    s_add_u32 s25, s24, s22
    s_lshl_b32 s25, s25, 6
    s_add_u32 s25, s25, s20
    s_sub_u32 s26, 2048, s25
    v_cmp_eq_u32 vcc, 0, {v(t[1])}
    v_mov_b32 {v(t[2])}, s26
    v_mov_b32 {v(t[3])}, s25
    v_mov_b32 {v(t[4])}, s22
    v_cndmask_b32 {v(row)}, {v(t[2])}, {v(t[3])}, vcc
    v_cndmask_b32_e64 {v(sa)}, 4, {v(t[4])}, vcc
    v_cndmask_b32_e64 {v(sb)}, {v(t[4])}, 4, vcc
    s_branch B_common
    B_special:""")
    def tau(d,j,a,b):
        k(f"""v_lshrrev_b32 {v(a)}, 1, {v(j)}
        v_add_u32 {v(a)}, s24, {v(a)}
        v_sub_u32 {v(b)}, 64, {v(a)}
        v_and_b32 {v(d)}, 1, {v(j)}
        v_cmp_eq_u32 vcc, 1, {v(d)}
        v_cndmask_b32 {v(d)}, {v(a)}, {v(b)}, vcc
        v_cmp_eq_u32 vcc, 64, {v(d)}
        v_cndmask_b32_e64 {v(d)}, {v(d)}, 32, vcc""")
    tau(vT,t[0],t[2],t[3])
    k(f"""v_and_b32 {v(vE)}, 1, {v(vT)}
    v_lshlrev_b32 {v(vE)}, 9, {v(vE)}
    v_lshlrev_b32 {v(vT)}, 5, {v(vT)}
    v_mov_b32 {v(vA)}, 0.5
    s_lshl_b32 s25, s22, 1
    v_add_u32 {v(sa)}, s25, {v(t[1])}""")
    tau(row,sa,t[2],t[3])
    k(f"""v_and_b32 {v(t[2])}, 31, {v(row)}
    v_xor_b32 {v(t[3])}, 1, {v(sa)}
    v_cmp_eq_u32 vcc, 0, {v(t[2])}
    v_cndmask_b32 {v(sb)}, {v(t[3])}, {v(sa)}, vcc
    v_lshlrev_b32 {v(row)}, 5, {v(row)}
    B_common:""")
    XR=R(10,2); WR=R(10,2); vx=R(); u=R()
    k(f"""v_and_b32 {v(u)}, 31, {v(L)}
    v_mul_u32_u24 {v(t[2])}, 40, {v(u)}
    v_mul_u32_u24 {v(vx)}, 1280, {v(row)}
    v_add_u32 {v(vx)}, {v(vx)}, {v(t[2])}""")
    for a,ad,sr in ((XR,vx,SX),(WR,t[2],SR)):
        k(f"buffer_load_dwordx4 {v(a,4)}, {v(ad)}, {s(sr,4)}, 0 offen\nbuffer_load_dwordx4 {v(a+4,4)}, {v(ad)}, {s(sr,4)}, 0 offen offset:16\nbuffer_load_dwordx2 {v(a+8,2)}, {v(ad)}, {s(sr,4)}, 0 offen offset:32")
    B.update(L=L,q=q,n=n,t=t,vT=vT,vE=vE,vA=vA,row=row,sa=sa,sb=sb,XR=XR,WR=WR,vx=vx,u=u)
    return B
def phaseB_dma(k,R,B,LD=""):
    vd=B['vl']
    k(f"s_mul_i32 s24, s22, {8*ZP}\ns_mul_i32 s25, s20, {ZG}\ns_mul_i32 s26, s22, 20480\ns_add_u32 s25, s25, s26")
    for r in range(8):
        k(f"s_add_u32 m0, s24, {ZP*r}\ns_add_u32 s26, s25, {2560*r}")
        for j in range(2): k(f"buffer_load_dwordx4 {v(vd)}, {s(SW,4)}, s26 offen offset:{1024*j}{LD} lds")
    k("s_mov_b32 exec_hi, 0")
    for r in range(8): k(f"s_add_u32 m0, s24, {ZP*r}\ns_add_u32 s26, s25, {2560*r}\nbuffer_load_dwordx4 {v(vd)}, {s(SW,4)}, s26 offen offset:2048{LD} lds")
    k("s_mov_b32 exec_hi, -1")
def phaseB_const(k,R,B):
    L,q,n,t,vT,vE,vA,sa,sb,u,XR,WR=[B[x] for x in 'L q n t vT vE vA sa sb u XR WR'.split()]
    MB=R(8,2); C2=R(4,2); S2=R(4,2); tc=R(8,2); ts=R(8,2); vr=R(); vy=R(); vy2=R(); sg=R()
    k(f"""v_and_b32 {v(t[0])}, 1, {v(q)}
    v_lshrrev_b32 {v(t[1])}, 1, {v(q)}
    v_lshlrev_b32 {v(t[0])}, 2, {v(t[0])}
    v_lshl_add_u32 {v(t[0])}, {v(t[1])}, 4, {v(t[0])}
    v_lshrrev_b32 {v(t[1])}, 3, {v(n)}
    v_lshl_add_u32 {v(t[2])}, {v(t[1])}, 9, {v(vE)}
    v_mad_u32_u24 {v(t[2])}, {v(vT)}, {v(t[0])}, {v(t[2])}
    v_cvt_f32_u32 {v(t[3])}, {v(vT)}
    v_cvt_f32_u32 {v(t[2])}, {v(t[2])}
    v_mul_f32 {v(t[3])}, {fl(1/2048)}, {v(t[3])}
    v_mul_f32 {v(t[2])}, {fl(1/2048)}, {v(t[2])}
    v_bfe_u32 {v(t[4])}, {v(L)}, 2, 2
    v_add_u32 {v(t[4])}, {v(t[4])}, {v(t[0])}
    v_mul_u32_u24 {v(vr)}, {ZP}, {v(t[4])}
    v_and_b32 {v(t[4])}, 3, {v(L)}
    v_mul_u32_u24 {v(t[4])}, 320, {v(t[4])}
    s_mul_i32 s24, s22, 40
    v_add3_u32 {v(vr)}, {v(vr)}, {v(t[4])}, s24
    v_and_b32 {v(t[4])}, 7, {v(L)}
    v_mul_u32_u24 {v(t[4])}, 2576, {v(t[4])}
    v_lshl_add_u32 {v(t[4])}, {v(t[1])}, 6, {v(t[4])}
    v_lshl_add_u32 {v(t[4])}, {v(q)}, 4, {v(t[4])}
    s_lshl_b32 s24, s22, 9
    s_add_u32 s24, s24, {YB}
    v_add_u32 {v(vy)}, s24, {v(t[4])}
    s_lshl_b32 s24, s22, 7
    s_add_u32 s24, s24, {YB+2048}
    v_add_u32 {v(vy2)}, s24, {v(t[4])}
    v_bfrev_b32 {v(sg)}, 1""")
    def trig(e,p0,ks,amp,dc,dsn):
        for j in range(8): k(f"v_fmamk_f32 {v(tc+j)}, {v(e)}, {fl(ks[j])}, {v(p0)}")
        for j in range(8): k(f"v_fract_f32 {v(tc+j)}, {v(tc+j)}")
        for j in range(8): k(f"v_sin_f32 {v(ts+j)}, {v(tc+j)}")
        for j in range(8): k(f"v_cos_f32 {v(tc+j)}, {v(tc+j)}")
        if amp is not None:
            for j in range(8): k(f"v_mul_f32 {v(ts+j)}, {v(amp)}, {v(ts+j)}")
            for j in range(8): k(f"v_mul_f32 {v(tc+j)}, {v(amp)}, {v(tc+j)}")
        for j in range(4): cvt(k,dsn+j,ts+2*j,ts+2*j+1)
        for j in range(4): cvt(k,dc+j,tc+2*j,tc+2*j+1)
    trig(t[3],t[2],[0,1,2,3,8,9,10,11],vA,MB,MB+4)
    k(f"""v_cvt_f32_u32 {v(t[3])}, {v(n)}
    v_cvt_f32_u32 {v(t[2])}, {v(q)}
    v_mul_f32 {v(t[3])}, {fl(1/32)}, {v(t[3])}
    v_mul_f32 {v(t[2])}, 4.0, {v(t[2])}
    v_mul_f32 {v(t[2])}, {v(t[3])}, {v(t[2])}""")
    trig(t[3],t[2],[0,1,2,3,16,17,18,19],None,C2,S2)
    n0,n1,m0_,m1,m2=[R() for _ in range(5)]
    k(f"""v_mul_u32_u24 {v(t[0])}, 2576, {v(sa)}
    v_lshl_add_u32 {v(n0)}, {v(u)}, 2, {v(t[0])}
    v_add_u32 {v(n0)}, {YB}, {v(n0)}
    v_add_u32 {v(n1)}, 128, {v(n0)}
    v_mul_u32_u24 {v(t[0])}, 2576, {v(sb)}
    v_add_u32 {v(t[0])}, {YB}, {v(t[0])}
    v_sub_u32 {v(t[1])}, 31, {v(u)}
    v_lshl_add_u32 {v(m0_)}, {v(t[1])}, 2, {v(t[0])}
    v_add_u32 {v(m1)}, 128, {v(m0_)}
    v_add_u32 {v(t[1])}, 1, {v(t[1])}
    v_and_b32 {v(t[1])}, 31, {v(t[1])}
    v_lshl_add_u32 {v(m2)}, {v(t[1])}, 2, {v(t[0])}""")
    vl=R(); vo1=R(); vw=R(); row=B['row']
    k(f"""v_lshlrev_b32 {v(vl)}, 4, {v(L)}
    v_readlane_b32 s60, {v(row)}, 0
    v_readlane_b32 s61, {v(row)}, 32
    s_mul_i32 s60, s60, 1280
    s_mul_i32 s61, s61, 1280
    s_add_u32 s24, s60, 1024
    s_sub_u32 s25, s61, 256
    v_mov_b32 {v(t[0])}, s24
    v_mov_b32 {v(t[1])}, s25
    v_cmp_gt_u32 vcc, 16, {v(L)}
    v_cndmask_b32 {v(t[0])}, {v(t[1])}, {v(t[0])}, vcc
    v_add_u32 {v(vo1)}, {v(t[0])}, {v(vl)}
    s_add_u32 s61, s61, 768
    s_mul_i32 s62, s22, 2560
    s_add_u32 s62, s62, {TW}
    v_mul_u32_u24 {v(vw)}, 40, {v(L)}
    v_add_u32 {v(vw)}, s62, {v(vw)}""")
    B.update(vl=vl,vo1=vo1,vw=vw)
    B.update(MB=MB,C2=C2,S2=S2,vr=vr,vy=vy,vy2=vy2,sg=sg,n0=n0,n1=n1,m0=m0_,m1=m1,m2=m2)
def red32(k,regs_,tmp,op="v_add_f32"):
    for r in (8,4,2,1):
        for a in regs_: k(f"{op}_dpp {v(a)}, {v(a)}, {v(a)} row_ror:{r} row_mask:0xf bank_mask:0xf")
    for a,b in zip(regs_,tmp): k(f"v_mov_b32 {v(b)}, {v(a)}")
    for a,b in zip(regs_,tmp): k(f"v_permlane16_swap_b32 {v(a)}, {v(b)}")
    for a,b in zip(regs_,tmp): k(f"{op} {v(a)}, {v(a)}, {v(b)}")
def phaseB_unpack(k,R,B):
    XR,WR,t=B['XR'],B['WR'],B['t']
    XF=R(20,2); WF=R(20,2); sw=R(2,2)
    k("s_mov_b32 s24, 0xffff0000")
    for a,f in ((XR,XF),(WR,WF)):
        for b4 in range(5):
            k(f"v_lshlrev_b32 {v(f+4*b4)}, 16, {v(a+2*b4)}\nv_lshlrev_b32 {v(f+4*b4+1)}, 16, {v(a+2*b4+1)}\nv_and_b32 {v(f+4*b4+2)}, s24, {v(a+2*b4)}\nv_and_b32 {v(f+4*b4+3)}, s24, {v(a+2*b4+1)}")
    k(f"v_pk_add_f32 {v(sw,2)}, {v(WF,2)}, {v(WF+2,2)}")
    for j in range(2,10): k(f"v_pk_add_f32 {v(sw,2)}, {v(sw,2)}, {v(WF+2*j,2)}")
    k(f"v_add_f32 {v(sw)}, {v(sw)}, {v(sw+1)}"); red32(k,[sw],[t[0]])
    B.update(XF=XF,WF=WF,sw=sw)
def phaseB_main(k,R,B,ST="",slot=False,s0=4):
    MB,C2,S2,vr,vy,vy2,sg,t,XF,WF,sw,vx,row,u=[B[x] for x in 'MB C2 S2 vr vy vy2 sg t XF WF sw vx row u'.split()]
    ZT=R(80,2); D=R(40,2); P2=ZT+40
    def rd_(r_):
        for ks in range(2):
            for xy in range(2):
                for rd in range(2): k(f"ds_read_b64_tr_b16 {v(ZT+16*r_+8*ks+4*xy+2*rd,2)}, {v(vr)} offset:{8*rd*ZP+160*ks+1280*xy+8*r_}")
    rd_(0); rd_(1)
    for r_ in range(5):
        k(f"s_waitcnt lgkmcnt({8 if r_<4 else 0})")
        for ks in range(2):
            for xy in range(2): mf(k,D+8*r_+4*xy,ZT+16*r_+8*ks+4*xy,MB+4*ks,D+8*r_+4*xy if ks else None)
        if r_+2<5: rd_(r_+2)
    U=ZT; F=ZT+20
    for r_ in range(5):
        for j in range(4): cvt(k,U+4*r_+j,D+8*r_+2*j,D+8*r_+2*j+1)
        for j in range(4): k(f"v_xor_b32 {v(P2+4*r_+j)}, {v(sg)}, {v(U+4*r_+j)}")
        for j in range(4): k(f"v_mov_b32_dpp {v(P2+4*r_+j)}, {v(U+4*r_+j)} row_ror:8 row_mask:0xf bank_mask:0x3")
        for j in range(4): k(f"v_xor_b32_dpp {v(U+4*r_+j)}, {v(U+4*r_+j)}, {v(sg)} row_ror:8 row_mask:0xf bank_mask:0xc")
        if r_: mf(k,F+4*r_-4,C2,U+4*r_-4,None); mf(k,F+4*r_-4,S2,P2+4*r_-4,F+4*r_-4)
    mf(k,F+16,C2,U+16,None); mf(k,F+16,S2,P2+16,F+16)
    for r_ in range(4): k(f"ds_write_b128 {v(vy)}, {v(F+4*r_,4)} offset:{128*r_}")
    k(f"ds_write_b128 {v(vy2)}, {v(F+16,4)}\ns_waitcnt lgkmcnt(0)\ns_barrier")
    stamp(k,s0)
    YN=D; YM=D+20
    for b4 in range(5):
        e=4*b4
        k(f"ds_read2st64_b32 {v(YN+e,2)}, {v(B['n0'])} offset0:{e//2} offset1:{e//2+1}\nds_read2st64_b32 {v(YN+e+2,2)}, {v(B['n1'])} offset0:{e//2} offset1:{e//2+1}")
        if b4==0: k(f"ds_read_b32 {v(YM)}, {v(B['m2'])}\nds_read_b32 {v(YM+1)}, {v(B['m0'])} offset:{128*18}")
        else: k(f"ds_read2st64_b32 {v(YM+e,2)}, {v(B['m0'])} offset0:{(20-e)//2} offset1:{(18-e)//2}")
        k(f"ds_read2st64_b32 {v(YM+e+2,2)}, {v(B['m1'])} offset0:{(18-e)//2} offset1:{(16-e)//2}")
    a1=ZT; a2=ZT+2; a3=ZT+4; H=XF
    for b4 in range(5):
        k(f"s_waitcnt lgkmcnt({min(15,16-4*b4)})")
        for e in (4*b4,4*b4+2): k(f"v_pk_add_f32 {v(YN+e,2)}, {v(YN+e,2)}, {v(YM+e,2)}")
        for e in (4*b4,4*b4+2): k(f"v_pk_add_f32 {v(H+e,2)}, {v(H+e,2)}, {v(YN+e,2)}")
        for e in (4*b4,4*b4+2):
            if e==0: k(f"v_pk_mul_f32 {v(a2,2)}, {v(H,2)}, {v(H,2)}\nv_pk_mul_f32 {v(a3,2)}, {v(H,2)}, {v(WF,2)}")
            else: k(f"v_pk_fma_f32 {v(a2,2)}, {v(H+e,2)}, {v(H+e,2)}, {v(a2,2)}\nv_pk_fma_f32 {v(a3,2)}, {v(H+e,2)}, {v(WF+e,2)}, {v(a3,2)}")
            if e==2: k(f"v_pk_add_f32 {v(a1,2)}, {v(H,2)}, {v(H+2,2)}")
            elif e>2: k(f"v_pk_add_f32 {v(a1,2)}, {v(a1,2)}, {v(H+e,2)}")
    for a in (a1,a2,a3): k(f"v_add_f32 {v(a)}, {v(a)}, {v(a+1)}")
    red32(k,[a1,a2,a3],t[0:3])
    k1=ZT+6; k0=ZT+8; sp=ZT+10; O=ZT+12
    k(f"""v_mul_f32 {v(sp+1)}, {fl(1/640)}, {v(a1)}
    v_mul_f32 {v(a2)}, {fl(1/640)}, {v(a2)}
    v_fma_f32 {v(a2)}, -{v(sp+1)}, {v(sp+1)}, {v(a2)}
    v_max_f32 {v(a2)}, 0, {v(a2)}""")
    rb(k,a2,t[0]); k(f"v_add_f32 {v(a2)}, {fl(1e-5)}, {v(a2)}"); rb(k,a2,t[0]); k(f"v_sqrt_f32 {v(a2)}, {v(a2)}"); rb(k,a2,t[0])
    k(f"""v_rcp_f32 {v(a2)}, {v(a2)}
    v_fma_f32 {v(a3)}, -{v(sp+1)}, {v(sw)}, {v(a3)}
    v_add_f32 {v(k1)}, 1.0, {v(a2)}
    v_mul_f32 {v(k0)}, {v(sp+1)}, {v(a2)}
    v_rcp_f32 {v(sp)}, {v(k1)}
    v_mul_f32 {v(a3)}, {v(a3)}, {v(a2)}""")
    k(f"""v_ashrrev_i32 {v(t[0])}, 31, {v(a3)}
    v_or_b32 {v(t[0])}, {v(sg)}, {v(t[0])}
    v_xor_b32 {v(t[0])}, {v(t[0])}, {v(a3)}
    v_and_b32 {v(t[0])}, 0xfffff800, {v(t[0])}
    v_sub_u32 {v(t[1])}, 0x7ff, {v(row)}
    v_or_b32 {v(t[0])}, {v(t[0])}, {v(t[1])}
    v_max_u32 {v(t[0])}, 1, {v(t[0])}
    v_lshrrev_b32 {v(t[2])}, 5, v0
    v_lshlrev_b32 {v(t[2])}, 2, {v(t[2])}
    ds_write_b32 {v(t[2])}, {v(t[0])} offset:{KL}
    v_mul_f32 {v(sp)}, {v(sp)}, {v(a2)}
    v_lshlrev_b32 {v(t[3])}, 3, {v(row)}
    v_add_u32 {v(t[2])}, s62, {v(B['vl'])}
    s_mov_b32 s25, {WS_ST}
    s_waitcnt lgkmcnt(0)
    s_barrier""")
    for j in range(10): k(f"v_pk_fma_f32 {v(H+2*j,2)}, {v(H+2*j,2)}, {v(k1,2)}, {v(k0,2)} op_sel_hi:[1,0,0] neg_lo:[0,0,1] neg_hi:[0,0,1]")
    for b4 in range(5): cvt(k,O+2*b4,H+4*b4,H+4*b4+2); cvt(k,O+2*b4+1,H+4*b4+1,H+4*b4+3); k(f"ds_write_b64 {v(B['vw'])}, {v(O+2*b4,2)} offset:{8*b4}")
    k("s_waitcnt lgkmcnt(0)")
    lin_out(k,O+12,t[2],[B['vl'],B['vo1'],B['vl']],SO,["s60","0","s61"],ST)
    k(f"""s_mov_b32 exec_lo, 1
    s_mov_b32 exec_hi, 1
    buffer_store_dwordx2 {v(sp,2)}, {v(t[3])}, {s(SW,4)}, s25 offen{ST}
    s_mov_b64 exec, -1""")
```

```python
import sys
from fused import *
NAME="sequential_preLN__spectral_fnet__moe_arch_mod__prompt_kernel"
k=K()
k("s_cmp_ge_u32 s2, 256\ns_cbranch_scc1 F_end"); stamp(k,0)
if DIAG:
    for i in range(1,16): k(f"s_mov_b32 s{64+2*i}, 0")
k("""s_load_dwordx2 s[4:5], s[0:1], 0
s_load_dwordx4 s[56:59], s[0:1], 80
s_load_dwordx2 s[6:7], s[0:1], 96
s_load_dwordx2 s[40:41], s[0:1], 48
s_and_b32 s20, s2, 31
s_lshr_b32 s21, s2, 5
v_lshrrev_b32 v1, 6, v0
v_readfirstlane_b32 s22, v1
s_and_b32 s23, s2, 7
s_lshr_b32 s24, s2, 3
s_cmp_lt_u32 s2, 96
s_cselect_b32 s25, 12, 5
s_cselect_b32 s26, 0, 12
s_mul_i32 s23, s23, s25
s_add_u32 s23, s23, s24
s_sub_u32 s23, s23, s26
s_waitcnt lgkmcnt(0)""")
srd(k,SX,4,XB); srd(k,SW,6,WS_SZ); srd(k,SO,56,XB)
srd(k,SDB,58,256)
k("s_cmp_eq_u32 s22, 4\ns_cbranch_scc1 F_loader")
srd(k,44,40,1280)
R=Alloc(2); phaseA(k,R," sc1"); hi=R.hi
k(f"s_waitcnt vmcnt(0)\ns_barrier"); stamp(k,5)
k(f"v_mov_b32 v2, {NL}\nds_read_b32 v3, v2")
R=Alloc(4); B=phaseB_pre(k,R,44); phaseB_const(k,R,B); k("s_waitcnt vmcnt(0)"); phaseB_unpack(k,R,B); stamp(k,6)
k(f"""s_cmp_lg_u32 s22, 0
s_cbranch_scc1 F_nopoll
v_lshlrev_b32 v2, 6, v0
s_mov_b32 s24, {WS_FL}
s_waitcnt lgkmcnt(0)""")
spin_init(k)
P=R.n+(R.n&1)
k(f"F_poll:\nbuffer_load_dwordx4 {v(P,4)}, v2, {s(SW,4)}, s24 offen sc1\ns_waitcnt vmcnt(0)")
for j in range(4): k(f"v_xor_b32 {v(P+j)}, {v(P+j)}, v3")
k(f"v_or3_b32 {v(P)}, {v(P)}, {v(P+1)}, {v(P+2)}\nv_or_b32 {v(P)}, {v(P)}, {v(P+3)}\nv_cmp_ne_u32 vcc, 0, {v(P)}"); spin_back(k,"F_poll")
k("F_nopoll:\ns_barrier"); stamp(k,7)
phaseB_dma(k,R,B," sc1"); k("s_waitcnt vmcnt(0)\ns_barrier"); stamp(k,8)
phaseB_main(k,R,B," sc1",True,14); hi=max(hi,R.hi); stamp(k,9)
k("s_cmp_ge_u32 s2, 136\ns_cbranch_scc1 F_fin")
R=Alloc(3); T=top2(k,R); n0=R.n
k("s_cmp_ge_u32 s2, 96\ns_cbranch_scc1 F_c2"); phaseC1(k,R,T); k("s_branch F_fin\nF_c2:"); R.n=n0; phaseC2(k,R,T)
k("F_fin:"); stamp(k,12); stamp_out(k,0,15); k("F_end:\ns_endpgm\nF_loader:"); loader(k)
open(sys.argv[1],'w').write(build([(NAME,256,320,F_LDS,hi,k.l)])); print(hi,len(k.l))
```
